```python
import torch

def _softmax(x, axis=-1):
    return torch.softmax(x, dim=axis)
def _gelu(x):
    return torch.nn.functional.gelu(x, approximate="tanh")
def _silu(x):
    return torch.nn.functional.silu(x)
def _sigmoid(x):
    return torch.sigmoid(x)
def _layernorm(x, axis=-1, eps=1e-5):
    m = x.mean(dim=axis, keepdim=True)
    v = x.var(dim=axis, keepdim=True, unbiased=False)
    return (x - m) / torch.sqrt(v + eps)
def _scatter_add(tgt, idx, src, axis=0):
    return tgt.clone().index_add_(axis, idx, src)
def _segment_sum(src, seg, n):
    out = torch.zeros((n,) + src.shape[1:], dtype=src.dtype)
    return out.index_add_(0, seg, src)
def _pad(x, pw):
    flat = tuple(v for pair in reversed(pw) for v in pair)
    return torch.nn.functional.pad(x, flat)

kernel_name = 'standalone__controlnet__diffusion'

def setup_inputs():

    _w = (lambda a: (lambda t: t.to(torch.bfloat16) if t.is_floating_point() else t)(torch.as_tensor(a)))
    B, HW, C = 2, 128, 128
    sc = C ** -0.5
    return {
        "x_frozen": _w((lambda *s: torch.randn(*s, dtype=torch.bfloat16) * 0.05)(B, HW, HW, C)),
        "x": _w((lambda *s: torch.randn(*s, dtype=torch.bfloat16) * 0.1)(B, HW, HW, C)),
        "c": _w((lambda *s: torch.randn(*s, dtype=torch.bfloat16) * 0.4)(B, HW, HW, C)),
        "w_z1": _w((lambda *s: torch.randn(*s, dtype=torch.bfloat16) * 0.4)(C, C) * sc),
        "w_z2": _w((lambda *s: torch.randn(*s, dtype=torch.bfloat16) * 0.1)(C, C) * sc),
        "w_conv": _w((lambda *s: torch.randn(*s, dtype=torch.bfloat16) * 0.1)(3, 3, C, C) * sc / 3.0),
    }

def reference(x_frozen, x, c, w_z1, w_z2, w_conv):
    B, H, W, C = x.shape
    h_in = x + torch.einsum("bhwc,cd->bhwd", c, w_z1)
    h = _silu(_layernorm(h_in, axis=-1))
    hp = _pad(h, ((0, 0), (1, 1), (1, 1), (0, 0)))
    acc = h * 0.0
    for di in range(3):
        for dj in range(3):
            acc = acc + torch.einsum("bhwc,cd->bhwd", hp[:, di:di + H, dj:dj + W, :], w_conv[di, dj])
    h = h_in + acc
    return x_frozen + torch.einsum("bhwc,cd->bhwd", h, w_z2)
```

```python
class R:
    __slots__ = ("k", "i", "n")

    def __init__(self, k, i, n=1):
        self.k, self.i, self.n = k, i, n

    def __str__(self):
        if self.n == 1:
            return f"{self.k}{self.i}"
        return f"{self.k}[{self.i}:{self.i + self.n - 1}]"

    def regs(self):
        return {f"{self.k}{self.i + j}" for j in range(self.n)}

    def __getitem__(self, j):
        if isinstance(j, slice):
            return R(self.k, self.i + j.start, j.stop - j.start)
        return R(self.k, self.i + j, 1)


def V(i, n=1): return R("v", i, n)
def A(i, n=1): return R("a", i, n)
def S(i, n=1): return R("s", i, n)


def regs_of(x):
    if isinstance(x, R):
        return x.regs()
    if isinstance(x, str):
        t = x.lstrip("-")
        if t in ("vcc", "m0", "exec", "scc"):
            return {t}
        if t and t[0] in "vas" and t[1:].isdigit():
            return {t}
    return set()


TRANS = ("v_exp_f32", "v_rcp_f32", "v_rsq_f32", "v_log_f32", "v_sqrt_f32")


class Tok:
    __slots__ = ("q", "idx")

    def __init__(self, q, idx):
        self.q, self.idx = q, idx


class Rec:
    __slots__ = ("pos", "kind", "w", "r", "c", "d_tuple", "trans")


class G:
    def __init__(self):
        self.lines = []
        self.hist = []
        self.pos = 0
        self.issued = {"vm": 0, "lg": 0}
        self.done = {"vm": 0, "lg": 0}
        self.cost = 0
        self.nops = 0

    def raw(self, text):
        self.lines.append(text)

    def comment(self, text):
        self.lines.append("  ; " + text)

    def _need_states(self, kind, w, r, c, d_tuple, trans, extra):
        need = 0
        for p in self.hist:
            gap = self.pos - p.pos - 1
            n = 0
            if p.kind == "valu":
                if kind == "mfma" and (p.w & (r | c)):
                    n = max(n, 2)
                if p.trans and kind == "valu" and not trans and (p.w & r):
                    n = max(n, 1)
                if kind == "valu" and extra.get("permlane") and (p.w & (r | w)):
                    n = max(n, 2)
                if kind == "valu" and extra.get("readlane") and (p.w & r):
                    n = max(n, 1)
                sw = {x for x in p.w if x[0] == "s" or x == "vcc"}
                if sw:
                    if kind in ("vmem",) and (sw & r):
                        n = max(n, 5)
                    if kind == "valu" and (sw & r):
                        n = max(n, 2)
            elif p.kind == "mfma":
                if kind == "mfma":
                    if p.w & r:
                        n = max(n, 12)
                    if p.w & c:
                        if d_tuple is not None and extra.get("c_tuple") == p.d_tuple:
                            pass
                        else:
                            n = max(n, 10)
                    elif p.w & w:
                        n = max(n, 10)
                elif kind in ("valu", "vmem", "ds"):
                    if p.w & (r | w):
                        n = max(n, 12)
                    if (p.c - p.w) & w:
                        n = max(n, 7)
            elif p.kind == "salu":
                if "m0" in p.w and extra.get("dma"):
                    n = max(n, 1)
            elif p.kind in ("vmem", "ds"):
                if p.trans and kind == "valu" and (p.r & w):
                    n = max(n, 2)
            need = max(need, n - gap)
        return need

    def _emit(self, text, kind, w=(), r=(), c=(), d_tuple=None, trans=False, cost=4, **extra):
        w, r, c = set(w), set(r), set(c)
        need = self._need_states(kind, w, r, c, d_tuple, trans, extra)
        while need > 0:
            k = min(need, 16)
            self.lines.append(f"  s_nop {k - 1}")
            self.pos += k
            self.cost += 4 * k
            self.nops += k
            need -= k
        self.lines.append("  " + text)
        rec = Rec()
        rec.pos, rec.kind, rec.w, rec.r, rec.c, rec.d_tuple, rec.trans = self.pos, kind, w, r, c, d_tuple, trans
        self.hist.append(rec)
        if len(self.hist) > 24:
            self.hist.pop(0)
        self.pos += 1
        self.cost += cost

    def need(self, *toks):
        want = {}
        for t in toks:
            if t is None:
                continue
            if t.idx < self.done[t.q]:
                continue
            after = self.issued[t.q] - 1 - t.idx
            want[t.q] = min(want.get(t.q, 10 ** 9), after)
        if not want:
            return
        parts = []
        for q, n in want.items():
            cap = 63 if q == "vm" else 15
            n = min(n, cap)
            parts.append(("vmcnt(%d)" if q == "vm" else "lgkmcnt(%d)") % n)
            self.done[q] = max(self.done[q], self.issued[q] - n)
        self._emit("s_waitcnt " + " ".join(parts), "other")

    def wait_all(self, vm=False, lg=False):
        parts = []
        if vm and self.done["vm"] < self.issued["vm"]:
            parts.append("vmcnt(0)")
            self.done["vm"] = self.issued["vm"]
        if lg and self.done["lg"] < self.issued["lg"]:
            parts.append("lgkmcnt(0)")
            self.done["lg"] = self.issued["lg"]
        if parts:
            self._emit("s_waitcnt " + " ".join(parts), "other")

    def _tok(self, q):
        t = Tok(q, self.issued[q])
        self.issued[q] += 1
        return t

    def salu(self, op, dst, *srcs):
        w = regs_of(dst)
        r = set()
        for s in srcs:
            r |= regs_of(s)
        self._emit(f"{op} {dst}, " + ", ".join(str(s) for s in srcs), "salu", w, r)

    def sop(self, text, w=(), r=()):
        self._emit(text, "salu", w, r)

    def valu(self, op, dst, *srcs, rmw=False, mods="", **extra):
        w = regs_of(dst)
        r = set()
        for s in srcs:
            r |= regs_of(s)
        if rmw or op.startswith("v_fmac"):
            r |= w
        trans = op in TRANS
        cost = 8 if trans else 4
        self._emit(f"{op} {dst}, " + ", ".join(str(s) for s in srcs) + mods, "valu", w, r, trans=trans, cost=cost, **extra)

    def vcmp(self, op, a, b):
        self._emit(f"{op} vcc, {a}, {b}", "valu", {"vcc"}, regs_of(a) | regs_of(b))

    def cndmask(self, dst, f, t):
        self._emit(f"v_cndmask_b32 {dst}, {f}, {t}, vcc", "valu", regs_of(dst), regs_of(f) | regs_of(t) | {"vcc"})

    def readfirstlane(self, sd, v):
        self._emit(f"v_readfirstlane_b32 {sd}, {v}", "valu", regs_of(sd), regs_of(v), readlane=True)

    def permlane32_swap(self, a, b):
        rr = regs_of(a) | regs_of(b)
        self._emit(f"v_permlane32_swap_b32 {a}, {b}", "valu", rr, rr, permlane=True)

    def mfma(self, d, a, b, c):
        cregs = regs_of(c)
        ct = str(c) if isinstance(c, R) else None
        self._emit(f"v_mfma_f32_32x32x16_bf16 {d}, {a}, {b}, {c}", "mfma", d.regs(), a.regs() | b.regs(), cregs,
                   d_tuple=str(d), cost=8, c_tuple=ct)

    def ds_read(self, dst, addr, off=0):
        op = {1: "ds_read_b32", 2: "ds_read_b64", 4: "ds_read_b128"}[dst.n]
        assert 0 <= off < 65536, off
        self._emit(f"{op} {dst}, {addr} offset:{off}", "ds", dst.regs(), addr.regs(), cost=12 if dst.n == 4 else 8)
        return self._tok("lg")

    def ds_tr(self, dst, addr, off=0):
        assert dst.n == 2 and 0 <= off < 65536
        self._emit(f"ds_read_b64_tr_b16 {dst}, {addr} offset:{off}", "ds", dst.regs(), addr.regs(), cost=6)
        return self._tok("lg")

    def ds_write(self, addr, src, off=0):
        op = {1: "ds_write_b32", 2: "ds_write_b64", 4: "ds_write_b128"}[src.n]
        assert 0 <= off < 65536
        self._emit(f"{op} {addr}, {src} offset:{off}", "ds", (), addr.regs() | src.regs(), cost=12 if src.n == 4 else 4,
                   trans=(src.n == 4))
        return self._tok("lg")

    def bload(self, dst, voff, srd, soff=0, off=0, flags=""):
        op = {1: "buffer_load_dword", 2: "buffer_load_dwordx2", 4: "buffer_load_dwordx4"}[dst.n]
        assert 0 <= off < 4096
        o = f" offset:{off}" if off else ""
        self._emit(f"{op} {dst}, {voff}, {srd}, {soff} offen{o}{flags}", "vmem", dst.regs(),
                   voff.regs() | srd.regs() | regs_of(soff), cost=8)
        return self._tok("vm")

    def dma(self, voff, srd, soff=0, off=0, flags=""):
        assert 0 <= off < 4096
        o = f" offset:{off}" if off else ""
        self._emit(f"buffer_load_dwordx4 {voff}, {srd}, {soff} offen{o}{flags} lds", "vmem", (),
                   voff.regs() | srd.regs() | regs_of(soff) | {"m0"}, cost=8, dma=True)
        return self._tok("vm")

    def bstore(self, src, voff, srd, soff=0, off=0, flags=""):
        op = {1: "buffer_store_dword", 2: "buffer_store_dwordx2", 4: "buffer_store_dwordx4"}[src.n]
        assert 0 <= off < 4096
        o = f" offset:{off}" if off else ""
        self._emit(f"{op} {src}, {voff}, {srd}, {soff} offen{o}{flags}", "vmem", (),
                   src.regs() | voff.regs() | srd.regs() | regs_of(soff), cost=8, trans=(src.n == 4))
        return self._tok("vm")

    def barrier(self):
        self._emit("s_barrier", "other")

    def text(self):
        return "\n".join(self.lines) + "\n"
```

```python
import sys
from dsl import *

RP = 4928
PP = 272
NSLOT = 4
AB = 0
HB = AB + NSLOT * 16384
SB = HB + 10 * RP
WB = SB + 2048
NS = (163840 - WB) // 4096
LDS_BYTES = WB + NS * 4096
assert LDS_BYTES <= 163840
SLOT = {0: 0, 1: 1, 2: 2, 3: 3, 4: 0, 5: 1}
def cslot(t): return AB + SLOT[t] * 16384
def xslot(t): return AB + SLOT[t] * 16384 + 8192
def xfbuf(j): return AB + 2 * 16384 + j * 8192
def ebuf(j): return AB + j * 8192

sXF, sX, sC, sOUT, sWZ1, sWZ2, sWC, sWS = (S(20, 4), S(24, 4), S(28, 4), S(32, 4), S(36, 4), S(40, 4), S(44, 4), S(48, 4))
sW = S(52); sTB = S(53); sRING = S(54); sZ1ST = S(55); sCDMA = S(56); s64w = S(57)
sYM = S(58); sXM = S(59); sY0 = S(60); sX0 = S(61); sL2E = S(62); sINV = S(63); sEPS = S(64); sTBM = S(65)
sT = [S(66), S(67), S(68), S(69)]
sTMP = S(70); sTMP2 = S(71); sTMP3 = S(72)

vLIN = V(1); vC0 = V(2); vC1 = V(3); vWS = V(4); vTR = V(5); vTZ = V(6); vB = V(7)
vCs = [V(8 + s) for s in range(8)]
vHW = V(16); vHWA = V(17); vHWB = V(18); vSW = V(19); vSR = V(20); vXa = [V(21), V(22)]
vT = [V(23 + i) for i in range(9)]
NB = 6
vBuf = [V(32 + 4 * i, 4) for i in range(NB)]
vID = [V(56, 4), V(60, 4)]
vRG = {4: [V(64), V(65)], 5: [V(66), V(67)]}
vPK = V(68, 8)
vPO = V(76, 8)
vOS = V(84, 8)
vAcc3 = V(96, 16)
vAcc2 = V(112, 16)
vAcc = [V(128 + 16 * j, 16) for j in range(4)]
vWZ = [V(192 + 4 * f, 4) for f in range(8)]
vLN = V(224, 32)


def wreg(f):
    return A(4 * f, 4) if f < 64 else V(224 + 4 * (f - 64), 4)


class Item:
    def __init__(self, mf, bsrc=None, epoch=0, pre=None, fn=None):
        self.mf = mf
        self.bsrc = bsrc
        self.epoch = epoch
        self.pre = pre
        self.fn = fn
        self.btok = None
        self.buf = None
        self.emitted = False


def build(cfg):
    g = G()
    hdr = [f"; @launch grid=(256,1,1) block=(256,1,1) lds={LDS_BYTES}",
           '.amdgcn_target "amdgcn-amd-amdhsa--gfx950"', ".text",
           ".globl standalone__controlnet__diffusion_kernel", ".p2align 8",
           ".type standalone__controlnet__diffusion_kernel,@function",
           "standalone__controlnet__diffusion_kernel:"]
    stamps = []
    STAMPS = cfg.get("stamps")

    def stamp(name):
        if not STAMPS:
            return
        if isinstance(STAMPS, list) and name not in STAMPS:
            return
        n = len(stamps)
        assert n < 19
        stamps.append(name)
        g.raw("  s_memtime s[74:75]")
        g.raw("  s_waitcnt lgkmcnt(0)")
        g.done["lg"] = g.issued["lg"]
        g.raw(f"  s_mov_b32 s{76 + n}, s74")
        g.pos += 3

    DJ = cfg.get("dj_order", (1, 0, 2))

    g.sop("s_cmp_ge_u32 s2, 256", r={"s2"})
    g.sop("s_cbranch_scc1 L_end")
    g.raw("  s_load_dwordx16 s[4:19], s[0:1], 0")
    if STAMPS:
        g.raw("  s_load_dwordx2 s[48:49], s[0:1], 64")
        g.raw("  s_memrealtime s[96:97]")
    g.pos += 2
    stamp("start")
    L = V(224); I = V(225); HF = V(226); t0 = V(227); t1 = V(228); t2 = V(229); t3 = V(230); vZS = V(231)
    vL16 = V(232)
    g.valu("v_and_b32", L, 63, V(0))
    g.valu("v_lshrrev_b32", t0, 6, V(0))
    g.readfirstlane(sW, t0)
    g.valu("v_and_b32", I, 31, V(0))
    g.valu("v_bfe_u32", HF, V(0), 5, 1)
    g.salu("s_and_b32", sTMP, "s2", 7)
    g.salu("s_lshl_b32", sTMP, sTMP, 5)
    g.salu("s_lshr_b32", sTMP2, "s2", 3)
    g.salu("s_add_u32", sTMP, sTMP, sTMP2)
    g.salu("s_lshr_b32", sTMP3, sTMP, 3)
    g.salu("s_lshl_b32", sTB, sTMP3, 18)
    g.salu("s_and_b32", sY0, sTMP3, 15)
    g.salu("s_lshl_b32", sY0, sY0, 3)
    g.salu("s_and_b32", sX0, sTMP, 7)
    g.salu("s_lshl_b32", sTMP3, sX0, 12)
    g.salu("s_lshl_b32", sX0, sX0, 4)
    g.salu("s_add_u32", sTB, sTB, sTMP3)
    g.salu("s_mov_b32", sT[0], sTB)
    for j in range(1, 4):
        g.salu("s_add_u32", sT[j], sTB, j * 32768)
    g.salu("s_lshl_b32", sCDMA, sW, 11)
    g.salu("s_lshl_b32", s64w, sW, 6)
    g.salu("s_lshr_b32", sTMP, sW, 1)
    g.salu("s_lshl_b32", sTMP, sTMP, 17)
    g.salu("s_and_b32", sTMP2, sW, 1)
    g.salu("s_lshl_b32", sTMP2, sTMP2, 3)
    g.valu("v_lshrrev_b32", t3, 4, L)
    g.valu("v_add_u32", t0, sTMP2, t3)
    g.valu("v_and_b32", t1, 15, L)
    g.valu("v_xor_b32", t2, t1, t0)
    g.valu("v_lshlrev_b32", t2, 4, t2)
    g.valu("v_lshl_add_u32", t2, t0, 8, t2)
    g.valu("v_add_u32", vC0, sTMP, t2)
    g.valu("v_add_u32", t0, 4, t0)
    g.valu("v_xor_b32", t2, t1, t0)
    g.valu("v_lshlrev_b32", t2, 4, t2)
    g.valu("v_lshl_add_u32", t2, t0, 8, t2)
    g.valu("v_add_u32", t2, sTMP, t2)
    g.valu("v_subrev_u32", vC1, 1024, t2)
    g.valu("v_bfe_u32", t0, L, 2, 2)
    g.valu("v_xor_b32", t0, t0, t3)
    g.valu("v_lshlrev_b32", t0, 6, t0)
    g.valu("v_lshl_add_u32", t0, t3, 8, t0)
    g.valu("v_and_b32", t1, 3, L)
    g.valu("v_lshl_add_u32", vZS, t1, 4, t0)
    g.valu("v_lshrrev_b32", t0, 2, L)
    g.valu("v_lshlrev_b32", t0, 8, t0)
    g.valu("v_lshl_add_u32", t0, t1, 4, t0)
    g.valu("v_add_u32", vWS, s64w, t0)
    g.valu("v_lshlrev_b32", vL16, 4, L)
    g.salu("s_mul_i32", sTMP3, sW, NS * 1024)
    g.salu("s_add_u32", sRING, sTMP3, WB)
    g.salu("s_lshl_b32", sZ1ST, sW, 13)
    g.raw("  s_waitcnt lgkmcnt(0)")
    g.pos += 1

    def mk_srd(srd, p, n):
        g.salu("s_mov_b32", srd[0], S(p))
        g.salu("s_mov_b32", srd[1], S(p + 1))
        g.salu("s_mov_b32", srd[2], n)
        g.salu("s_mov_b32", srd[3], "0x00020000")
    mk_srd(sC, 8, 8388608)
    mk_srd(sX, 6, 8388608)

    atok = {}

    def issue_T(j):
        g.salu("s_add_u32", "m0", sCDMA, cslot(j))
        a = g.dma(vC0, sC, sT[j])
        b = g.dma(vC1, sC, sT[j], off=1024)
        g.salu("s_add_u32", "m0", sCDMA, xslot(j))
        c = g.dma(vC0, sX, sT[j])
        d = g.dma(vC1, sX, sT[j], off=1024)
        atok[j] = [a, b, c, d]

    def issue_R(t):
        toks = []
        for srd, base in ((sC, cslot(t)), (sX, xslot(t))):
            g.salu("s_add_u32", "m0", sCDMA, base)
            toks.append(g.dma(vRG[t][0], srd, 0))
            toks.append(g.dma(vRG[t][1], srd, 0, off=1024))
        atok[t] = toks

    worder = []
    for dj in DJ:
        for s in range(8):
            for di in range(3):
                worder.append((di, dj, s))
    widx = {k: f for f, k in enumerate(worder)}
    NW = 80
    wdma = [None] * NW
    wtr = [None] * NW

    def wunit_src(f):
        if f < 72:
            di, dj, s = worder[f]
            return sWC, ((di * 3 + dj) * 128 + 16 * s) * 256
        return sWZ2, (f - 72) * 4096

    def wunit_dst(f):
        return wreg(f) if f < 72 else vWZ[f - 72]

    def issue_W(f):
        srd, off = wunit_src(f)
        g.salu("s_add_u32", "m0", sRING, (f % NS) * 1024)
        g.salu("s_mov_b32", sTMP, off)
        wdma[f] = g.dma(vWS, srd, sTMP)

    def tr_W(f):
        g.need(wdma[f])
        d = wunit_dst(f)
        g.ds_tr(d[0:2], vTR, (f % NS) * 1024)
        wtr[f] = g.ds_tr(d[2:4], vTR, (f % NS) * 1024 + 256)

    z1dma = []

    def issue_wz1():
        for h in range(2):
            g.salu("s_add_u32", "m0", sZ1ST, HB + h * 4096)
            g.salu("s_add_u32", sTMP, sZ1ST, h * 4096)
            for m in range(4):
                z1dma.append(g.dma(vZS, sWZ1, sTMP, off=m * 1024))

    def issue_warm():
        g.salu("s_lshr_b32", sTMP2, "s2", 3)
        g.salu("s_mul_i32", sTMP, sTMP2, 9216)
        g.salu("s_lshl_b32", sTMP3, sW, 10)
        g.salu("s_add_u32", sTMP, sTMP, sTMP3)
        g.bload(A(240, 4), vL16, sWC, sTMP)
        g.salu("s_add_u32", sTMP, sTMP, 4096)
        g.bload(A(244, 4), vL16, sWC, sTMP)
        g.valu("v_and_b32", t0, 0xf0, vL16)
        g.salu("s_mul_i32", sTMP, sTMP2, 9216)
        g.salu("s_lshl_b32", sTMP3, sW, 8)
        g.salu("s_add_u32", sTMP, sTMP, sTMP3)
        g.salu("s_add_u32", sTMP, sTMP, 8192)
        g.bload(A(248, 4), t0, sWC, sTMP)
        g.salu("s_lshl_b32", sTMP, sTMP2, 10)
        g.salu("s_add_u32", sTMP, sTMP, sTMP3)
        g.bload(A(252, 4), t0, sWZ2, sTMP)

    vBIG = V(233)

    def ring_coords(tile, idx, hr, hc, tmp):
        if tile == 4:
            g.valu("v_lshrrev_b32", hr, 1, idx)
            g.valu("v_add_u32", hr, 1, hr)
            g.valu("v_and_b32", hc, 1, idx)
            g.valu("v_mul_u32_u24", hc, 17, hc)
            g.valu("v_subrev_u32", tmp, 16, idx)
            g.vcmp("v_cmp_gt_u32", 16, idx)
            g.cndmask(hr, 0, hr)
            g.cndmask(hc, tmp, hc)
        else:
            g.valu("v_subrev_u32", tmp, 2, idx)
            g.valu("v_mov_b32", hr, 9)
            g.vcmp("v_cmp_gt_u32", 18, idx)
            g.cndmask(hr, 0, hr)
            g.cndmask(hc, tmp, idx)

    def setup_ring(tile):
        hr, hc, tmp, idx, sw = V(234), V(235), V(236), V(237), V(238)
        for e in range(2):
            dst = vRG[tile][e]
            g.salu("s_lshl_b32", sTMP, sW, 3)
            g.salu("s_add_u32", sTMP, sTMP, 4 * e)
            g.valu("v_lshrrev_b32", idx, 4, L)
            g.valu("v_add_u32", idx, sTMP, idx)
            ring_coords(tile, idx, hr, hc, tmp)
            g.valu("v_lshlrev_b32", dst, 15, hr)
            g.valu("v_lshl_add_u32", dst, hc, 8, dst)
            g.valu("v_add_u32", dst, sTBM, dst)
            g.valu("v_xor_b32", sw, idx, L)
            g.valu("v_and_b32", sw, 15, sw)
            g.valu("v_lshl_add_u32", dst, sw, 4, dst)
            if e == 1:
                g.valu("v_subrev_u32", dst, 1024, dst)
            g.valu("v_add_u32", tmp, sYM, hr)
            g.vcmp("v_cmp_gt_u32", 128, tmp)
            g.cndmask(dst, vBIG, dst)
            g.valu("v_add_u32", tmp, sXM, hc)
            g.vcmp("v_cmp_gt_u32", 128, tmp)
            g.cndmask(dst, vBIG, dst)
            if tile == 5:
                g.vcmp("v_cmp_gt_u32", 20, idx)
                g.cndmask(dst, vBIG, dst)
        ring_coords(tile, I, hr, hc, tmp)
        hw = vHWA if tile == 4 else vHWB
        g.valu("v_mul_u32_u24", hw, RP, hr)
        g.valu("v_mul_u32_u24", tmp, PP, hc)
        g.valu("v_add3_u32", hw, hw, tmp, s64w)
        g.valu("v_lshl_add_u32", hw, HF, 4, hw)
        g.valu("v_add_u32", hw, HB, hw)
        if tile == 5:
            g.valu("v_mov_b32", tmp, AB)
            g.vcmp("v_cmp_gt_u32", 20, I)
            g.cndmask(hw, tmp, hw)

    made = set()
    for ev in cfg.get("issue_order", ["T0", "Z", "T1", "WARM", "T2", "T3", "W"]):
        if ev[0] == "T":
            issue_T(int(ev[1]))
        elif ev == "Z":
            mk_srd(sWZ1, 10, 32768)
            issue_wz1()
        elif ev == "WARM":
            mk_srd(sWC, 14, 294912)
            mk_srd(sWZ2, 12, 32768)
            made.add("wc")
            issue_warm()
        elif ev == "W":
            if "wc" not in made:
                mk_srd(sWC, 14, 294912)
                mk_srd(sWZ2, 12, 32768)
            prew = cfg.get("setup_before_W", True)
            if prew:
                break
            for f in range(NS):
                issue_W(f)
        stamp("i" + ev)

    mk_srd(sXF, 4, 8388608)
    mk_srd(sOUT, 16, 8388608)
    if STAMPS:
        g.salu("s_mov_b32", sWS[2], "0x10000000")
        g.salu("s_mov_b32", sWS[3], "0x00020000")
    g.valu("v_bfe_u32", t1, L, 4, 1)
    g.valu("v_lshlrev_b32", t0, 5, t1)
    g.valu("v_and_b32", t1, 1, L)
    g.valu("v_lshl_add_u32", t0, t1, 4, t0)
    g.valu("v_bfe_u32", t1, L, 1, 1)
    g.valu("v_lshl_add_u32", t0, t1, 3, t0)
    g.valu("v_bfe_u32", t1, L, 2, 2)
    g.valu("v_lshl_add_u32", t2, HF, 3, t1)
    g.valu("v_lshl_add_u32", t3, t2, 6, t0)
    g.valu("v_add_u32", vTR, sRING, t3)
    g.valu("v_lshl_add_u32", t3, t2, 8, t0)
    g.valu("v_xor_b32", t1, sW, t1)
    g.valu("v_lshl_add_u32", t3, t1, 6, t3)
    g.valu("v_add_u32", vTZ, HB, t3)
    g.valu("v_lshrrev_b32", t0, 4, I)
    g.valu("v_mul_u32_u24", t0, 4 * RP, t0)
    g.valu("v_and_b32", t1, 15, I)
    g.valu("v_mul_u32_u24", t2, PP, t1)
    g.valu("v_lshl_add_u32", t2, HF, 4, t2)
    g.valu("v_add_u32", t0, t0, t2)
    g.valu("v_add_u32", vB, HB, t0)
    g.valu("v_add_u32", t0, RP + PP, vB)
    g.valu("v_add_u32", vHW, s64w, t0)
    g.valu("v_xor_b32", t0, HF, t1)
    g.valu("v_lshlrev_b32", t0, 4, t0)
    g.valu("v_lshl_add_u32", vCs[0], I, 8, t0)
    for s in range(1, 8):
        g.valu("v_xor_b32", vCs[s], s << 5, vCs[0])
    g.valu("v_xor_b32", vXa[0], s64w, vCs[0])
    g.valu("v_xor_b32", vXa[1], 32, vXa[0])
    g.valu("v_add_u32", vLIN, sCDMA, vL16)
    g.salu("s_lshl_b32", sTMP, sW, 2)
    g.salu("s_add_u32", sTMP, sTMP, SB)
    g.valu("v_add_u32", vSW, sTMP, vL16)
    g.valu("v_lshlrev_b32", t0, 4, I)
    g.valu("v_add_u32", vSR, SB, t0)
    g.valu("v_bfe_u32", t0, I, 3, 1)
    g.valu("v_and_b32", t1, 3, I)
    g.valu("v_lshl_add_u32", t0, t0, 2, t1)
    g.valu("v_and_b32", t1, 1, t0)
    g.valu("v_lshlrev_b32", t1, 4, t1)
    g.salu("s_mov_b32", sTMP, "0x3f80")
    g.valu("v_lshlrev_b32", t1, t1, sTMP)
    g.valu("v_lshrrev_b32", t0, 1, t0)
    g.valu("v_lshrrev_b32", t2, 4, I)
    g.valu("v_lshl_add_u32", t0, t2, 2, t0)
    g.valu("v_bfe_u32", t2, I, 2, 1)
    g.valu("v_mov_b32", t3, 63)
    g.vcmp("v_cmp_eq_u32", t2, HF)
    g.cndmask(t0, t3, t0)
    for n in range(8):
        g.vcmp("v_cmp_eq_u32", n, t0)
        g.cndmask(V(56 + n), 0, t1)
    g.salu("s_mov_b32", sL2E, "0x3fb8aa3b")
    g.salu("s_mov_b32", sINV, "0x3c000000")
    g.salu("s_mov_b32", sEPS, "0x3727c5ac")
    g.salu("s_sub_u32", sTBM, sTB, 32768 + 256)
    g.salu("s_sub_u32", sYM, sY0, 1)
    g.salu("s_sub_u32", sXM, sX0, 1)
    g.valu("v_mov_b32", vBIG, "0x7f000000")
    setup_ring(4)
    setup_ring(5)
    stamp("setup")
    if cfg.get("setup_before_W", True):
        for f in range(NS):
            issue_W(f)
    stamp("issued")

    state = {"epoch": 0, "nread": 0}
    Q = []
    qpos = {"cur": 0, "pf": 0}
    reads_emitted = []

    def prefetch(depth=NB - 1):
        while qpos["pf"] < len(Q):
            it = Q[qpos["pf"]]
            if it.bsrc is None:
                if it.fn is not None and not it.emitted:
                    pass
                qpos["pf"] += 1
                continue
            ep = it.epoch() if callable(it.epoch) else it.epoch
            if ep is None or ep > state["epoch"]:
                break
            n = state["nread"]
            if n >= NB and not reads_emitted[n - NB].emitted:
                break
            ahead = sum(1 for x in reads_emitted[-NB:] if not x.emitted)
            if ahead >= depth:
                break
            it.buf = vBuf[n % NB]
            it.btok = g.ds_read(it.buf, it.bsrc[0], it.bsrc[1])
            reads_emitted.append(it)
            state["nread"] += 1
            qpos["pf"] += 1

    def run(items, fillers, min_budget=12, spread=True):
        nm = sum(len(it.mf) for it in items)
        tot = sum(f[1] for f in fillers)
        per = max(min_budget, tot / nm if (nm and spread) else 0)
        fi = 0
        credit = 0
        tm = 0
        for it in items:
            assert Q[qpos["cur"]] is it
            if it.fn is not None:
                it.fn()
                it.emitted = True
                qpos["cur"] += 1
                continue
            prefetch()
            if it.btok is None:
                raise RuntimeError("B read not issued (epoch?)")
            g.need(it.btok, *(it.pre() if it.pre else []))
            for k, (D, Aop, C) in enumerate(it.mf):
                g.mfma(D, Aop, it.buf, C)
                tm += 32
                if k == len(it.mf) - 1:
                    it.emitted = True
                    c0 = g.cost
                    prefetch()
                    credit -= (g.cost - c0) if not spread else 0
                credit = min(credit + per, 2 * per)
                while fi < len(fillers) and credit > 0:
                    f = fillers[fi]
                    if len(f) > 2 and f[2] > tm:
                        break
                    f[0]()
                    credit -= f[1]
                    fi += 1
            qpos["cur"] += 1
        while fi < len(fillers):
            fillers[fi][0]()
            fi += 1

    pending = []

    def sync(*toks):
        g.need(*toks, *pending)
        pending.clear()
        g.barrier()
        state["epoch"] += 1

    z1tr = {}

    def z1_items(t, acc, epoch):
        its = []
        for s in range(8):
            C = 0 if s == 0 else acc
            its.append(Item([(acc, vWZ[s], C)], bsrc=(vCs[s], cslot(t)), epoch=epoch, pre=(lambda s=s: [z1tr[s]])))
        for s in range(2):
            its.append(Item([(acc, vID[s], acc)], bsrc=(vXa[s], xslot(t)), epoch=epoch))
        return its

    def stats_ops(acc, buf):
        s1, s2 = vT[0], vT[1]
        ops = []
        ops.append((lambda: g.valu("v_add_f32", s1, acc[0], acc[1]), 4))
        ops.append((lambda: g.valu("v_mul_f32", s2, acc[0], acc[0]), 4))
        ops.append((lambda: g.valu("v_fmac_f32", s2, acc[1], acc[1]), 4))
        for i in range(2, 16):
            ops.append((lambda i=i: g.valu("v_add_f32", s1, s1, acc[i]), 4))
            ops.append((lambda i=i: g.valu("v_fmac_f32", s2, acc[i], acc[i]), 4))
        ops.append((lambda: g.permlane32_swap(s1, s2), 8))
        ops.append((lambda: g.valu("v_add_f32", s1, s1, s2), 4))
        ops.append((lambda: pending.append(g.ds_write(vSW, s1, buf * 1024)), 4))
        return ops

    def norm_ops(acc, buf, hw, hoff):
        st = vLN[0:8]
        y = vLN[8:16]
        e = vLN[16:24]
        pk = vLN[24:28]
        a_, b_, m_, v_ = vT[2], vT[3], vT[4], vT[5]
        tk = {}
        ops = []

        def rd():
            tk[0] = g.ds_read(st[0:4], vSR, buf * 1024)
            tk[1] = g.ds_read(st[4:8], vSR, buf * 1024 + 512)
        ops.append((rd, 24))

        def red():
            g.need(tk[0], tk[1])
            g.valu("v_add_f32", st[0], st[0], st[1])
            g.valu("v_add_f32", st[4], st[4], st[5])
            g.valu("v_add_f32", st[2], st[2], st[3])
            g.valu("v_add_f32", st[6], st[6], st[7])
            g.valu("v_add_f32", st[0], st[0], st[2])
            g.valu("v_add_f32", st[4], st[4], st[6])
        ops.append((red, 28))

        def fin():
            g.valu("v_mul_f32", m_, sINV, st[0])
            g.valu("v_mul_f32", v_, sINV, st[4])
            g.valu("v_fma_f32", v_, "-" + str(m_), m_, v_)
            g.valu("v_max_f32", v_, 0, v_)
            g.valu("v_add_f32", v_, sEPS, v_)
            g.valu("v_rsq_f32", v_, v_)
            g.valu("v_mul_f32", a_, sL2E, v_)
            g.valu("v_mul_f32", b_, m_, a_)
        ops.append((fin, 40))
        for h in range(2):
            for i in range(8):
                ops.append((lambda i=i, h=h: g.valu("v_fma_f32", y[i], acc[8 * h + i], a_, "-" + str(b_)), 5))
            for i in range(8):
                ops.append((lambda i=i: g.valu("v_exp_f32", e[i], "-" + str(y[i])), 8))
            for i in range(8):
                ops.append((lambda i=i: g.valu("v_fma_f32", e[i], e[i], sL2E, sL2E), 5))
            for i in range(8):
                ops.append((lambda i=i: g.valu("v_rcp_f32", e[i], e[i]), 8))
            for i in range(8):
                ops.append((lambda i=i: g.valu("v_mul_f32", y[i], y[i], e[i]), 4))
            for i in range(4):
                ops.append((lambda i=i: g.valu("v_cvt_pk_bf16_f32", pk[i], y[2 * i], y[2 * i + 1]), 5))
            ops.append((lambda h=h: pending.append(g.ds_write(hw, pk, hoff + 32 * h)), 12))
        return ops

    wp = {"tr": 0, "iss": NS}

    def pump_ops(n, lag=2, tmin=None):
        ops = []
        for _ in range(n):
            if wp["tr"] >= NW:
                break
            f = wp["tr"]
            ops.append((lambda f=f: tr_W(f), 16) + ((tmin,) if tmin is not None else ()))
            wp["tr"] += 1
            fr = wp["tr"] - 1 - lag
            if fr >= 0 and fr + NS < NW and fr + NS == wp["iss"]:
                def refill(fr=fr):
                    g.need(wtr[fr])
                    issue_W(fr + NS)
                ops.append((refill, 24) + ((tmin,) if tmin is not None else ()))
                wp["iss"] += 1
        return ops

    def pump_flush_refills():
        ops = []
        while wp["iss"] < NW and wp["iss"] - NS < wp["tr"]:
            def refill(fr=wp["iss"] - NS):
                g.need(wtr[fr])
                issue_W(fr + NS)
            ops.append((refill, 24))
            wp["iss"] += 1
        return ops

    def conv_item(p, dj, s, epoch):
        mf, fs = [], []
        for di in range(3):
            j = p - di
            if 0 <= j <= 3:
                f = widx[(di, dj, s)]
                fs.append(f)
                mf.append((vAcc[j], wreg(f), vAcc[j]))
        return Item(mf, bsrc=(vB, p * RP + dj * PP + 32 * s), epoch=epoch, pre=(lambda fs=fs: [wtr[f] for f in fs]))

    xftok = {}

    def xf_ops(j):
        def f():
            g.salu("s_add_u32", "m0", sCDMA, xfbuf(j))
            xftok[j] = [g.dma(vC0, sXF, sT[j]), g.dma(vC1, sXF, sT[j], off=1024)]
        return [(f, 24)]

    def z2_pre_ops(j):
        ops = []
        for h in range(2):
            for i in range(4):
                ops.append((lambda i=i, h=h: g.valu("v_cvt_pk_bf16_f32", vPK[4 * h + i], vAcc[j][8 * h + 2 * i],
                                                    vAcc[j][8 * h + 2 * i + 1]), 5))
            ops.append((lambda h=h: pending.append(g.ds_write(vXa[h], vPK[4 * h:4 * h + 4], ebuf(j))), 12))
        return ops

    def z2_items(j, epoch):
        its = []
        for s in range(8):
            C = 0 if s == 0 else vAcc2
            its.append(Item([(vAcc2, vWZ[s], C)], bsrc=(vCs[s], ebuf(j)), epoch=epoch, pre=(lambda s=s: [wtr[72 + s]])))
        for s in range(2):
            its.append(Item([(vAcc2, vID[s], vAcc2)], bsrc=(vXa[s], xfbuf(j)), epoch=epoch))
        return its

    def z2_post_ops(j):
        ops = []
        for h in range(2):
            for i in range(4):
                ops.append((lambda i=i, h=h: g.valu("v_cvt_pk_bf16_f32", vPO[4 * h + i], vAcc2[8 * h + 2 * i],
                                                    vAcc2[8 * h + 2 * i + 1]), 5))
            ops.append((lambda h=h: pending.append(g.ds_write(vXa[h], vPO[4 * h:4 * h + 4], xfbuf(j))), 12))
        return ops

    def out_ops(j):
        tk = {}
        ops = []

        def rd():
            tk[0] = g.ds_read(vOS[0:4], vLIN, xfbuf(j))
            tk[1] = g.ds_read(vOS[4:8], vLIN, xfbuf(j) + 1024)
        ops.append((rd, 24))

        def st0():
            g.need(tk[0])
            g.bstore(vOS[0:4], vC0, sOUT, sT[j])

        def st1():
            g.need(tk[1])
            g.bstore(vOS[4:8], vC1, sOUT, sT[j], off=1024)
        ops.append((lambda: None, 24))
        ops.append((st0, 12))
        ops.append((st1, 12))
        return ops

    accs = {0: vAcc[0], 1: vAcc[1], 2: vAcc[2], 3: vAcc[3], 4: vAcc2, 5: vAcc3}
    hws = {0: (vHW, 0), 1: (vHW, RP), 2: (vHW, 2 * RP), 3: (vHW, 3 * RP), 4: (vHWA, 0), 5: (vHWB, 0)}
    ES = cfg.get("early_s", NS // 3)
    dj0 = DJ[0]
    done_groups = set()

    def groups(ps, djs, ss, epoch):
        out = []
        for p in ps:
            for dj in djs:
                for s in ss:
                    if (p, dj, s) in done_groups:
                        continue
                    done_groups.add((p, dj, s))
                    out.append(conv_item(p, dj, s, epoch))
        return out

    plans = []
    for t in range(6):
        its = z1_items(t, accs[t], t + 1)
        extra = []
        if t == 4:
            extra = groups([1, 2], [dj0], range(ES), 4)
        if t == 5:
            extra = groups([3, 4], [dj0], range(ES), 6)
        plans.append(its + extra)
    for pl in plans:
        Q.extend(pl)

    for t in range(6):
        if t == 0:
            sync(*z1dma, *atok[0])
            for s in range(8):
                g.ds_tr(vWZ[s][0:2], vTZ, s * 4096)
                z1tr[s] = g.ds_tr(vWZ[s][2:4], vTZ, s * 4096 + 1024)
            pending.append(z1tr[7])
        else:
            sync(*atok[t])
        stamp(f"step{t}")
        fill = []
        if t == 1:
            fill += [(lambda: issue_R(4), 40)]
        if t == 2:
            fill += [(lambda: issue_R(5), 40)]
        if t >= 1:
            fill += norm_ops(accs[t - 1], (t - 1) & 1, *hws[t - 1])
        if t == 3:
            fill += pump_ops(NS) + pump_flush_refills()
        if t == 5:
            fill += pump_ops(cfg.get("pump5", 4))
        z, rest = plans[t][:10], plans[t][10:]
        if rest:
            k = len(fill) * 10 // (10 + sum(len(i.mf) for i in rest))
            run(z, fill[:k])
            run(rest, fill[k:] + stats_ops(accs[t], t & 1))
        else:
            run(z, fill)
            run([], stats_ops(accs[t], t & 1))

    sync()
    stamp("step6")
    ep6 = state["epoch"]
    seq = [(dj, s) for dj in DJ for s in range(8)]
    dW = cfg.get("dW", 240)
    tRB = cfg.get("tRB", 900)
    have = wp["tr"] // 3
    avail = {}
    for k, key in enumerate(seq):
        avail[key] = 0 if k < have else (k - have + 1) * dW + 120
    prio = [1, 2, 0, 3, 4, 5]
    todo = [(p, dj, s) for p in prio for (dj, s) in seq if (p, dj, s) not in done_groups]
    needM = {j: {(p, dj, s) for p in (j, j + 1, j + 2) for (dj, s) in seq} - done_groups for j in range(4)}
    tW2 = (24 - have) * dW + 3 * dW + 120
    events = []
    t = 0
    rb_done = False
    z2_ready = {}
    z2_started = set()
    zorder = []
    z2_last = -10**9
    while todo or len(z2_started) < 4:
        if not rb_done and t >= tRB:
            events.append(("rb", t))
            rb_done = True
        cand = None
        for j in range(4):
            if j in z2_ready and j not in z2_started and t >= z2_ready[j] and t >= tW2 and t >= z2_last + 320 + 128:
                cand = ("z2", j)
                break
        if cand is None:
            for key in todo:
                p, dj, s = key
                if avail[(dj, s)] <= t and (rb_done or p not in (0, 5)):
                    cand = ("g", key)
                    break
        if cand is None:
            t += 32
            if not todo and not rb_done:
                events.append(("rb", t)); rb_done = True
            continue
        events.append(cand + (t,))
        if cand[0] == "z2":
            z2_started.add(cand[1])
            z2_last = t
            t += 320
        else:
            key = cand[1]
            todo.remove(key)
            p = key[0]
            t += 32 * len([di for di in range(3) if 0 <= p - di <= 3])
            for j in range(4):
                needM[j].discard(key)
                if not needM[j] and j not in z2_ready:
                    z2_ready[j] = t + cfg.get("z2lag", 192)
                    events.append(("z2pre", j, t))
    sys.stderr.write(f"modelled main phase {t} cycles; z2 starts {[e[2] for e in events if e[0]=='z2']}\n")

    items = []
    fillers = []
    epochs = {}
    fillers += [(f[0], f[1], 0) for f in norm_ops(accs[5], 1, *hws[5])]
    k0 = have
    extra_units = wp["tr"] - 3 * have
    pump_timed = []
    for k in range(have, 27):
        n = 3 - (extra_units if k == have else 0)
        pump_timed += pump_ops(n, tmin=(k - have + 1) * dW - 60)
    xf_t = cfg.get("xf_t", 1500)
    xf_timed = []
    for j in range(4):
        xf_timed += [(f[0], f[1], xf_t + 64 * j) for f in xf_ops(j)]
    timed = []
    for f in pump_timed + xf_timed:
        timed.append(f)
    last_post = None
    for ev in events:
        if ev[0] == "g":
            p, dj, s = ev[1]
            ep = ep6 if p not in (0, 5) else (lambda: epochs.get("rb"))
            items.append(conv_item(p, dj, s, ep))
        elif ev[0] == "rb":
            def f_rb():
                sync()
                epochs["rb"] = state["epoch"]
                stamp("step7")
            items.append(Item([], fn=f_rb))
            items[-1].kind = ("rb", ev[1])
        elif ev[0] == "z2pre":
            j = ev[1]
            timed += [(f[0], f[1], ev[2]) for f in z2_pre_ops(j)]
        elif ev[0] == "z2":
            j = ev[1]

            def f_z(j=j):
                sync(*xftok[j])
                epochs[("z", j)] = state["epoch"]
                stamp(f"z2_{j}")
            it = Item([], fn=f_z)
            it.kind = ("z2sync", ev[2], j)
            items.append(it)
            items += z2_items(j, (lambda j=j: epochs.get(("z", j))))
            timed += [(f[0], f[1], ev[2] + 320 + 64) for f in z2_post_ops(j)]
            if j > 0:
                timed += [(f[0], f[1], ev[2] + 32) for f in out_ops(zorder[-1])]
            zorder.append(j)
    timed.sort(key=lambda f: f[2])
    allf = fillers + timed
    Q.extend(items)

    fi = 0
    tm = 0
    credit = 0
    per = cfg.get("per", 16)
    for it in items:
        assert Q[qpos["cur"]] is it
        if it.fn is not None:
            tl = it.kind[1]
            while fi < len(allf) and allf[fi][2] <= tl:
                allf[fi][0]()
                fi += 1
            it.fn()
            it.emitted = True
            qpos["cur"] += 1
            continue
        prefetch()
        if it.btok is None:
            raise RuntimeError("B read not issued (epoch?)")
        pre = it.pre() if it.pre else []
        while any(x is None for x in pre):
            allf[fi][0]()
            fi += 1
            pre = it.pre()
        g.need(it.btok, *pre)
        for k, (D, Aop, C) in enumerate(it.mf):
            g.mfma(D, Aop, it.buf, C)
            tm += 32
            c0 = g.cost
            if k == len(it.mf) - 1:
                it.emitted = True
                prefetch()
            credit = min(credit + 24 - (g.cost - c0), 48)
            while fi < len(allf) and credit > 0 and allf[fi][2] <= tm:
                allf[fi][0]()
                credit -= allf[fi][1]
                fi += 1
        qpos["cur"] += 1
    while fi < len(allf):
        allf[fi][0]()
        fi += 1
    sync()
    for f in out_ops(zorder[-1]):
        f[0]()
    stamp("end")
    if STAMPS:
        g.raw("  s_waitcnt vmcnt(0)")
        g.raw("  s_memtime s[74:75]")
        g.raw("  s_memrealtime s[98:99]")
        g.raw("  s_waitcnt lgkmcnt(0)")
        n = len(stamps)
        g.raw(f"  s_mov_b32 s{76 + n}, s74")
        n += 1
        stamps.append("drained")
        g.raw("  s_lshl_b32 s3, s2, 2")
        g.raw("  s_add_u32 s3, s3, s52")
        g.raw("  s_lshl_b32 s3, s3, 7")
        g.raw("  v_mov_b32 v0, 0")
        for i in range(n):
            g.raw(f"  v_mov_b32 v1, s{76 + i}")
            g.raw(f"  buffer_store_dword v1, v0, s[48:51], s3 offen offset:{4 * i}")
        g.raw("  v_mov_b32 v1, s96")
        g.raw(f"  buffer_store_dword v1, v0, s[48:51], s3 offen offset:{4 * 30}")
        g.raw("  v_mov_b32 v1, s98")
        g.raw(f"  buffer_store_dword v1, v0, s[48:51], s3 offen offset:{4 * 31}")
    g.raw("L_end:")
    g.raw("  s_endpgm")
    tail = """.section .rodata,"a"
.p2align 6
.amdhsa_kernel standalone__controlnet__diffusion_kernel
  .amdhsa_next_free_vgpr 512
  .amdhsa_next_free_sgpr 102
  .amdhsa_accum_offset 256
  .amdhsa_group_segment_fixed_size 0
  .amdhsa_kernarg_size 72
  .amdhsa_user_sgpr_count 2
  .amdhsa_user_sgpr_kernarg_segment_ptr 1
  .amdhsa_system_sgpr_workgroup_id_x 1
.end_amdhsa_kernel
"""
    sys.stderr.write(f"est issue cycles {g.cost}, nops {g.nops}, lines {len(g.lines)}, NS {NS}\n")
    if STAMPS:
        open(cfg.get("_out", "x") + ".names", "w").write(",".join(stamps))
    return "\n".join(hdr) + "\n" + g.text() + tail


if __name__ == "__main__":
    import json
    out = sys.argv[1]
    cfg = json.loads(sys.argv[2]) if len(sys.argv) > 2 else {}
    cfg["_out"] = out
    open(out, "w").write(build(cfg))
```

```python
import sys
from dsl import *

RP = 4928
PP = 272
NSLOT = 3
AB = 0
HB = AB + NSLOT * 16384
SB = HB + 10 * RP
WB = SB + 2048
NS = (163840 - WB) // 4096
LDS_BYTES = WB + NS * 4096
assert LDS_BYTES <= 163840
SLOT = {}
def cslot(t): return AB + SLOT[t] * 16384
def xslot(t): return AB + SLOT[t] * 16384 + 8192
def xfbuf(j): return AB + j * 8192
def ebuf(j): return AB + 2 * 16384 + (j & 1) * 8192

sXF, sX, sC, sOUT, sWZ1, sWZ2, sWC, sWS = (S(20, 4), S(24, 4), S(28, 4), S(32, 4), S(36, 4), S(40, 4), S(44, 4), S(48, 4))
sW = S(52); sTB = S(53); sRING = S(54); sZ1ST = S(55); sCDMA = S(56); s64w = S(57)
sYM = S(58); sXM = S(59); sY0 = S(60); sX0 = S(61); sL2E = S(62); sINV = S(63); sEPS = S(64); sTBM = S(65)
sT = [S(66), S(67), S(68), S(69)]
sTMP = S(70); sTMP2 = S(71); sTMP3 = S(72)

vLIN = V(1); vC0 = V(2); vC1 = V(3); vWS = V(4); vTR = V(5); vTZ = V(6); vB = V(7)
vCs = [V(8 + s) for s in range(8)]
vHW = V(16); vHWA = V(17); vHWB = V(18); vSW = V(19); vSR = V(20); vXa = [V(21), V(22)]
vT = [V(23 + i) for i in range(9)]
NB = 6
vBuf = [V(32 + 4 * i, 4) for i in range(NB)]
vID = [V(56, 4), V(60, 4)]
vRG = {4: [V(64), V(65)], 5: [V(66), V(67)]}
vWD = [V(4), V(92), V(93)]
vWZ2 = [V(4), V(94), V(95)]
vPK = V(68, 8)
vPO = V(76, 8)
vOS = V(84, 8)
vAcc3 = V(96, 16)
vAcc2 = V(112, 16)
vAcc = [V(128 + 16 * j, 16) for j in range(4)]
vWZ = [V(192 + 4 * f, 4) for f in range(8)]
vLN = V(224, 32)


def wreg(f):
    return A(4 * f, 4) if f < 64 else V(224 + 4 * (f - 64), 4)


class Item:
    def __init__(self, mf, bsrc=None, epoch=0, pre=None, fn=None):
        self.mf = mf
        self.bsrc = bsrc
        self.epoch = epoch
        self.pre = pre
        self.fn = fn
        self.btok = None
        self.buf = None
        self.emitted = False


def build(cfg):
    g = G()
    hdr = [f"; @launch grid=(256,1,1) block=(256,1,1) lds={LDS_BYTES}",
           '.amdgcn_target "amdgcn-amd-amdhsa--gfx950"', ".text",
           ".globl standalone__controlnet__diffusion_kernel", ".p2align 8",
           ".type standalone__controlnet__diffusion_kernel,@function",
           "standalone__controlnet__diffusion_kernel:"]
    stamps = []
    STAMPS = cfg.get("stamps")

    def stamp(name):
        if not STAMPS:
            return
        if isinstance(STAMPS, list) and name not in STAMPS:
            return
        n = len(stamps)
        assert n < 19
        stamps.append(name)
        g.raw("  s_memtime s[74:75]")
        g.raw("  s_waitcnt lgkmcnt(0)")
        g.done["lg"] = g.issued["lg"]
        g.raw(f"  s_mov_b32 s{76 + n}, s74")
        g.pos += 3

    DJ = cfg.get("dj_order", (1, 0, 2))
    for k_, t_ in enumerate(cfg.get("order", [0, 1, 4, 2, 3, 5])):
        SLOT[t_] = k_ % 3
    FA = cfg.get("fa", " nt"); FX = cfg.get("fx", " nt"); FS = cfg.get("fs", " nt"); FWARM = cfg.get("fwarm", ""); FW = cfg.get("fw", ""); FZ = cfg.get("fz", "")

    g.sop("s_cmp_ge_u32 s2, 256", r={"s2"})
    g.sop("s_cbranch_scc1 L_end")
    g.raw("  s_load_dwordx16 s[4:19], s[0:1], 0")
    if STAMPS:
        g.raw("  s_load_dwordx2 s[48:49], s[0:1], 64")
        g.raw("  s_memrealtime s[96:97]")
    g.pos += 2
    stamp("start")
    L = V(224); I = V(225); HF = V(226); t0 = V(227); t1 = V(228); t2 = V(229); t3 = V(230); vZS = V(231)
    vL16 = V(232)
    g.valu("v_and_b32", L, 63, V(0))
    g.valu("v_lshrrev_b32", t0, 6, V(0))
    g.readfirstlane(sW, t0)
    g.valu("v_and_b32", I, 31, V(0))
    g.valu("v_bfe_u32", HF, V(0), 5, 1)
    if cfg.get("codepf"):
        nl = cfg["codepf"]
        g.raw("  s_getpc_b64 s[90:91]")
        g.raw("L_pc:")
        g.pos += 1
        g.salu("s_lshr_b32", sTMP, "s2", 3)
        g.salu("s_lshl_b32", sTMP, sTMP, 2)
        g.salu("s_add_u32", sTMP, sTMP, sW)
        g.salu("s_mul_i32", sTMP, sTMP, nl * 128)
        g.valu("v_and_b32", t0, nl - 1, V(0))
        g.valu("v_lshlrev_b32", t0, 7, t0)
        g.valu("v_add_u32", t0, sTMP, t0)
        g.valu("v_min_u32", t0, "L_end-L_pc", t0)
        g.raw("  global_load_dword a235, v227, s[90:91]")
        g.pos += 1
        g._tok("vm")
    g.salu("s_and_b32", sTMP, "s2", 7)
    g.salu("s_lshl_b32", sTMP, sTMP, 5)
    g.salu("s_lshr_b32", sTMP2, "s2", 3)
    g.salu("s_add_u32", sTMP, sTMP, sTMP2)
    g.salu("s_lshr_b32", sTMP3, sTMP, 3)
    g.salu("s_lshl_b32", sTB, sTMP3, 18)
    g.salu("s_and_b32", sY0, sTMP3, 15)
    g.salu("s_lshl_b32", sY0, sY0, 3)
    g.salu("s_and_b32", sX0, sTMP, 7)
    g.salu("s_lshl_b32", sTMP3, sX0, 12)
    g.salu("s_lshl_b32", sX0, sX0, 4)
    g.salu("s_add_u32", sTB, sTB, sTMP3)
    g.salu("s_mov_b32", sT[0], sTB)
    for j in range(1, 4):
        g.salu("s_add_u32", sT[j], sTB, j * 32768)
    g.salu("s_lshl_b32", sCDMA, sW, 11)
    g.salu("s_lshl_b32", s64w, sW, 6)
    g.salu("s_lshr_b32", sTMP, sW, 1)
    g.salu("s_lshl_b32", sTMP, sTMP, 17)
    g.salu("s_and_b32", sTMP2, sW, 1)
    g.salu("s_lshl_b32", sTMP2, sTMP2, 3)
    g.valu("v_lshrrev_b32", t3, 4, L)
    g.valu("v_add_u32", t0, sTMP2, t3)
    g.valu("v_and_b32", t1, 15, L)
    g.valu("v_xor_b32", t2, t1, t0)
    g.valu("v_lshlrev_b32", t2, 4, t2)
    g.valu("v_lshl_add_u32", t2, t0, 8, t2)
    g.valu("v_add_u32", vC0, sTMP, t2)
    g.valu("v_add_u32", t0, 4, t0)
    g.valu("v_xor_b32", t2, t1, t0)
    g.valu("v_lshlrev_b32", t2, 4, t2)
    g.valu("v_lshl_add_u32", t2, t0, 8, t2)
    g.valu("v_add_u32", t2, sTMP, t2)
    g.valu("v_subrev_u32", vC1, 1024, t2)
    g.valu("v_bfe_u32", t0, L, 2, 2)
    g.valu("v_xor_b32", t0, t0, t3)
    g.valu("v_lshlrev_b32", t0, 6, t0)
    g.valu("v_lshl_add_u32", t0, t3, 8, t0)
    g.valu("v_and_b32", t1, 3, L)
    g.valu("v_lshl_add_u32", vZS, t1, 4, t0)
    g.valu("v_lshrrev_b32", t0, 2, L)
    g.valu("v_lshlrev_b32", t0, 8, t0)
    g.valu("v_lshl_add_u32", t0, t1, 4, t0)
    g.valu("v_add_u32", vWS, s64w, t0)
    g.valu("v_add_u32", vWD[1], 98304 - 1024, vWS)
    g.valu("v_add_u32", vWD[2], 2 * (98304 - 1024), vWS)
    g.valu("v_add_u32", vWZ2[1], 4096 - 1024, vWS)
    g.valu("v_add_u32", vWZ2[2], 2 * (4096 - 1024), vWS)
    g.valu("v_lshlrev_b32", vL16, 4, L)
    g.salu("s_mul_i32", sTMP3, sW, NS * 1024)
    g.salu("s_add_u32", sRING, sTMP3, WB)
    g.salu("s_lshl_b32", sZ1ST, sW, 13)
    g.raw("  s_waitcnt lgkmcnt(0)")
    g.pos += 1

    def mk_srd(srd, p, n):
        g.salu("s_mov_b32", srd[0], S(p))
        g.salu("s_mov_b32", srd[1], S(p + 1))
        g.salu("s_mov_b32", srd[2], n)
        g.salu("s_mov_b32", srd[3], "0x00020000")
    mk_srd(sC, 8, 8388608)
    mk_srd(sX, 6, 8388608)

    atok = {}

    def issue_T(j):
        g.salu("s_add_u32", "m0", sCDMA, cslot(j))
        a = g.dma(vC0, sC, sT[j], flags=FA)
        b = g.dma(vC1, sC, sT[j], off=1024, flags=FA)
        g.salu("s_add_u32", "m0", sCDMA, xslot(j))
        c = g.dma(vC0, sX, sT[j], flags=FA)
        d = g.dma(vC1, sX, sT[j], off=1024, flags=FA)
        atok[j] = [a, b, c, d]

    def act_piece(t, i):
        srd, base = ((sC, cslot(t)), (sX, xslot(t)))[i >> 1]
        g.salu("s_add_u32", "m0", sCDMA, base)
        if t < 4:
            tok = g.dma((vC0, vC1)[i & 1], srd, sT[t], off=1024 * (i & 1), flags=FA)
        else:
            tok = g.dma(vRG[t][i & 1], srd, 0, off=1024 * (i & 1), flags=FA)
        atok.setdefault(t, []).append(tok)

    def issue_R(t):
        toks = []
        for srd, base in ((sC, cslot(t)), (sX, xslot(t))):
            g.salu("s_add_u32", "m0", sCDMA, base)
            toks.append(g.dma(vRG[t][0], srd, 0, flags=FA))
            toks.append(g.dma(vRG[t][1], srd, 0, off=1024, flags=FA))
        atok[t] = toks

    worder = []
    for dj in DJ:
        for s in range(8):
            for di in range(3):
                worder.append((di, dj, s))
    widx = {k: f for f, k in enumerate(worder)}
    NW = 80
    wdma = [None] * NW
    wtr = [None] * NW

    def wunit_src(f):
        if f < 72:
            di, dj, s = worder[f]
            return sWC, ((di * 3 + dj) * 128 + 16 * s) * 256
        return sWZ2, (f - 72) * 4096

    def wunit_dst(f):
        return wreg(f) if f < 72 else vWZ[f - 72]

    NG = 27
    NGS = NS // 3

    def issue_WG(k):
        g.salu("s_add_u32", "m0", sRING, (k % NGS) * 3072)
        f0 = 3 * k
        srd, off = wunit_src(f0)
        g.salu("s_mov_b32", sTMP, off)
        for i in range(3):
            f = f0 + i
            if f >= NW:
                break
            vo = vWD[i] if f < 72 else vWZ2[i]
            wdma[f] = g.dma(vo, srd, sTMP, off=1024 * i, flags=FW)

    def tr_WG(k):
        fs = [f for f in range(3 * k, 3 * k + 3) if f < NW]
        g.need(wdma[fs[-1]])
        for i, f in enumerate(fs):
            d = wunit_dst(f)
            o = (k % NGS) * 3072 + 1024 * i
            g.ds_tr(d[0:2], vTR, o)
            wtr[f] = g.ds_tr(d[2:4], vTR, o + 256)

    z1dma = []

    def issue_wz1(hs=(0, 1)):
        for h in hs:
            g.salu("s_add_u32", "m0", sZ1ST, HB + h * 4096)
            g.salu("s_add_u32", sTMP, sZ1ST, h * 4096)
            for m in range(4):
                z1dma.append(g.dma(vZS, sWZ1, sTMP, off=m * 1024, flags=FZ))

    def issue_warm():
        g.salu("s_lshr_b32", sTMP2, "s2", 3)
        g.salu("s_mul_i32", sTMP, sTMP2, 9216)
        g.salu("s_lshl_b32", sTMP3, sW, 10)
        g.salu("s_add_u32", sTMP, sTMP, sTMP3)
        g.bload(A(240, 4), vL16, sWC, sTMP, flags=FWARM)
        g.salu("s_add_u32", sTMP, sTMP, 4096)
        g.bload(A(244, 4), vL16, sWC, sTMP, flags=FWARM)
        g.valu("v_and_b32", t0, 0xf0, vL16)
        g.salu("s_mul_i32", sTMP, sTMP2, 9216)
        g.salu("s_lshl_b32", sTMP3, sW, 8)
        g.salu("s_add_u32", sTMP, sTMP, sTMP3)
        g.salu("s_add_u32", sTMP, sTMP, 8192)
        g.bload(A(248, 4), t0, sWC, sTMP, flags=FWARM)
        g.salu("s_lshl_b32", sTMP, sTMP2, 10)
        g.salu("s_add_u32", sTMP, sTMP, sTMP3)
        g.bload(A(252, 4), t0, sWZ2, sTMP, flags=FWARM)
        if cfg.get("warm_z1", True):
            g.bload(A(236, 4), t0, sWZ1, sTMP, flags=FWARM)

    vBIG = V(233)

    def ring_coords(tile, idx, hr, hc, tmp):
        if tile == 4:
            g.valu("v_lshrrev_b32", hr, 1, idx)
            g.valu("v_add_u32", hr, 1, hr)
            g.valu("v_and_b32", hc, 1, idx)
            g.valu("v_mul_u32_u24", hc, 17, hc)
            g.valu("v_subrev_u32", tmp, 16, idx)
            g.vcmp("v_cmp_gt_u32", 16, idx)
            g.cndmask(hr, 0, hr)
            g.cndmask(hc, tmp, hc)
        else:
            g.valu("v_subrev_u32", tmp, 2, idx)
            g.valu("v_mov_b32", hr, 9)
            g.vcmp("v_cmp_gt_u32", 18, idx)
            g.cndmask(hr, 0, hr)
            g.cndmask(hc, tmp, idx)

    def setup_ring(tile):
        hr, hc, tmp, idx, sw = V(234), V(235), V(236), V(237), V(238)
        for e in range(2):
            dst = vRG[tile][e]
            g.salu("s_lshl_b32", sTMP, sW, 3)
            g.salu("s_add_u32", sTMP, sTMP, 4 * e)
            g.valu("v_lshrrev_b32", idx, 4, L)
            g.valu("v_add_u32", idx, sTMP, idx)
            ring_coords(tile, idx, hr, hc, tmp)
            g.valu("v_lshlrev_b32", dst, 15, hr)
            g.valu("v_lshl_add_u32", dst, hc, 8, dst)
            g.valu("v_add_u32", dst, sTBM, dst)
            g.valu("v_xor_b32", sw, idx, L)
            g.valu("v_and_b32", sw, 15, sw)
            g.valu("v_lshl_add_u32", dst, sw, 4, dst)
            if e == 1:
                g.valu("v_subrev_u32", dst, 1024, dst)
            g.valu("v_add_u32", tmp, sYM, hr)
            g.vcmp("v_cmp_gt_u32", 128, tmp)
            g.cndmask(dst, vBIG, dst)
            g.valu("v_add_u32", tmp, sXM, hc)
            g.vcmp("v_cmp_gt_u32", 128, tmp)
            g.cndmask(dst, vBIG, dst)
            if tile == 5:
                g.vcmp("v_cmp_gt_u32", 20, idx)
                g.cndmask(dst, vBIG, dst)
        ring_coords(tile, I, hr, hc, tmp)
        hw = vHWA if tile == 4 else vHWB
        g.valu("v_mul_u32_u24", hw, RP, hr)
        g.valu("v_mul_u32_u24", tmp, PP, hc)
        g.valu("v_add3_u32", hw, hw, tmp, s64w)
        g.valu("v_lshl_add_u32", hw, HF, 4, hw)
        g.valu("v_add_u32", hw, HB, hw)
        if tile == 5:
            g.valu("v_mov_b32", tmp, AB + 2 * 16384)
            g.vcmp("v_cmp_gt_u32", 20, I)
            g.cndmask(hw, tmp, hw)

    mk_srd(sWZ1, 10, 32768)
    mk_srd(sWC, 14, 294912)
    mk_srd(sWZ2, 12, 32768)

    def do_issue(ev):
        if ev[0] == "T":
            issue_T(int(ev[1]))
        elif ev == "R4":
            issue_R(4)
        elif ev == "Z":
            issue_wz1()
        elif ev == "Za":
            issue_wz1((0,))
        elif ev == "Zb":
            issue_wz1((1,))
        elif ev == "WARM":
            issue_warm()
        stamp("i" + ev)
    for ev in cfg.get("issue_a", ["T0", "Z"]):
        do_issue(ev)

    mk_srd(sXF, 4, 8388608)
    mk_srd(sOUT, 16, 8388608)
    if STAMPS:
        g.salu("s_mov_b32", sWS[2], "0x10000000")
        g.salu("s_mov_b32", sWS[3], "0x00020000")
    g.valu("v_bfe_u32", t1, L, 4, 1)
    g.valu("v_lshlrev_b32", t0, 5, t1)
    g.valu("v_and_b32", t1, 1, L)
    g.valu("v_lshl_add_u32", t0, t1, 4, t0)
    g.valu("v_bfe_u32", t1, L, 1, 1)
    g.valu("v_lshl_add_u32", t0, t1, 3, t0)
    g.valu("v_bfe_u32", t1, L, 2, 2)
    g.valu("v_lshl_add_u32", t2, HF, 3, t1)
    g.valu("v_lshl_add_u32", t3, t2, 6, t0)
    g.valu("v_add_u32", vTR, sRING, t3)
    g.valu("v_lshl_add_u32", t3, t2, 8, t0)
    g.valu("v_xor_b32", t1, sW, t1)
    g.valu("v_lshl_add_u32", t3, t1, 6, t3)
    g.valu("v_add_u32", vTZ, HB, t3)
    g.valu("v_lshrrev_b32", t0, 4, I)
    g.valu("v_mul_u32_u24", t0, 4 * RP, t0)
    g.valu("v_and_b32", t1, 15, I)
    g.valu("v_mul_u32_u24", t2, PP, t1)
    g.valu("v_lshl_add_u32", t2, HF, 4, t2)
    g.valu("v_add_u32", t0, t0, t2)
    g.valu("v_add_u32", vB, HB, t0)
    g.valu("v_add_u32", t0, RP + PP, vB)
    g.valu("v_add_u32", vHW, s64w, t0)
    g.valu("v_xor_b32", t0, HF, t1)
    g.valu("v_lshlrev_b32", t0, 4, t0)
    g.valu("v_lshl_add_u32", vCs[0], I, 8, t0)
    for s in range(1, 8):
        g.valu("v_xor_b32", vCs[s], s << 5, vCs[0])
    g.valu("v_xor_b32", vXa[0], s64w, vCs[0])
    g.valu("v_xor_b32", vXa[1], 32, vXa[0])
    g.valu("v_add_u32", vLIN, sCDMA, vL16)
    g.salu("s_lshl_b32", sTMP, sW, 2)
    g.salu("s_add_u32", sTMP, sTMP, SB)
    g.valu("v_add_u32", vSW, sTMP, vL16)
    g.valu("v_lshlrev_b32", t0, 4, I)
    g.valu("v_add_u32", vSR, SB, t0)
    g.valu("v_bfe_u32", t0, I, 3, 1)
    g.valu("v_and_b32", t1, 3, I)
    g.valu("v_lshl_add_u32", t0, t0, 2, t1)
    g.valu("v_and_b32", t1, 1, t0)
    g.valu("v_lshlrev_b32", t1, 4, t1)
    g.salu("s_mov_b32", sTMP, "0x3f80")
    g.valu("v_lshlrev_b32", t1, t1, sTMP)
    g.valu("v_lshrrev_b32", t0, 1, t0)
    g.valu("v_lshrrev_b32", t2, 4, I)
    g.valu("v_lshl_add_u32", t0, t2, 2, t0)
    g.valu("v_bfe_u32", t2, I, 2, 1)
    g.valu("v_mov_b32", t3, 63)
    g.vcmp("v_cmp_eq_u32", t2, HF)
    g.cndmask(t0, t3, t0)
    for n in range(8):
        g.vcmp("v_cmp_eq_u32", n, t0)
        g.cndmask(V(56 + n), 0, t1)
    g.salu("s_mov_b32", sL2E, "0x3fb8aa3b")
    g.salu("s_mov_b32", sINV, "0x3c000000")
    g.salu("s_mov_b32", sEPS, "0x3727c5ac")
    g.salu("s_sub_u32", sTBM, sTB, 32768 + 256)
    g.salu("s_sub_u32", sYM, sY0, 1)
    g.salu("s_sub_u32", sXM, sX0, 1)
    g.valu("v_mov_b32", vBIG, "0x7f000000")
    setup_ring(4)
    setup_ring(5)
    stamp("setup")
    for ev in cfg.get("issue_b", ["T1", "WARM", "T2" if cfg.get("order", [0, 1, 4, 2, 3, 5])[2] == 2 else "R4"]):
        do_issue(ev)
    stamp("issued")

    state = {"epoch": 0, "nread": 0}
    Q = []
    qpos = {"cur": 0, "pf": 0}
    reads_emitted = []

    def prefetch(depth=NB - 1):
        while qpos["pf"] < len(Q):
            it = Q[qpos["pf"]]
            if it.bsrc is None:
                if it.fn is not None and not it.emitted:
                    pass
                qpos["pf"] += 1
                continue
            ep = it.epoch() if callable(it.epoch) else it.epoch
            if ep is None or ep > state["epoch"]:
                break
            n = state["nread"]
            if n >= NB and not reads_emitted[n - NB].emitted:
                break
            ahead = sum(1 for x in reads_emitted[-NB:] if not x.emitted)
            if ahead >= depth:
                break
            it.buf = vBuf[n % NB]
            it.btok = g.ds_read(it.buf, it.bsrc[0], it.bsrc[1])
            reads_emitted.append(it)
            state["nread"] += 1
            qpos["pf"] += 1

    def run(items, fillers, min_budget=12, spread=True):
        nm = sum(len(it.mf) for it in items)
        tot = sum(f[1] for f in fillers)
        per = max(min_budget, tot / nm if (nm and spread) else 0)
        fi = 0
        credit = 0
        tm = 0
        for it in items:
            assert Q[qpos["cur"]] is it
            if it.fn is not None:
                it.fn()
                it.emitted = True
                qpos["cur"] += 1
                continue
            prefetch()
            if it.btok is None:
                raise RuntimeError("B read not issued (epoch?)")
            g.need(it.btok, *(it.pre() if it.pre else []))
            for k, (D, Aop, C) in enumerate(it.mf):
                g.mfma(D, Aop, it.buf, C)
                tm += 32
                if k == len(it.mf) - 1:
                    it.emitted = True
                    c0 = g.cost
                    prefetch()
                    credit -= (g.cost - c0) if not spread else 0
                credit = min(credit + per, 2 * per)
                while fi < len(fillers) and credit > 0:
                    f = fillers[fi]
                    if len(f) > 2 and f[2] > tm:
                        break
                    f[0]()
                    credit -= f[1]
                    fi += 1
            qpos["cur"] += 1
        while fi < len(fillers):
            fillers[fi][0]()
            fi += 1

    pending = []

    def sync(*toks):
        g.need(*toks, *pending)
        pending.clear()
        g.barrier()
        state["epoch"] += 1

    z1tr = {}

    def z1_items(t, acc, epoch):
        its = []
        for s in range(8):
            C = 0 if s == 0 else acc
            its.append(Item([(acc, vWZ[s], C)], bsrc=(vCs[s], cslot(t)), epoch=epoch, pre=(lambda s=s: [z1tr[s]])))
        for s in range(2):
            its.append(Item([(acc, vID[s], acc)], bsrc=(vXa[s], xslot(t)), epoch=epoch))
        return its

    def stats_ops(acc, buf):
        s1, s2 = vT[0], vT[1]
        ops = []
        ops.append((lambda: g.valu("v_add_f32", s1, acc[0], acc[1]), 4))
        ops.append((lambda: g.valu("v_mul_f32", s2, acc[0], acc[0]), 4))
        ops.append((lambda: g.valu("v_fmac_f32", s2, acc[1], acc[1]), 4))
        for i in range(2, 16):
            ops.append((lambda i=i: g.valu("v_add_f32", s1, s1, acc[i]), 4))
            ops.append((lambda i=i: g.valu("v_fmac_f32", s2, acc[i], acc[i]), 4))
        ops.append((lambda: g.permlane32_swap(s1, s2), 8))
        ops.append((lambda: g.valu("v_add_f32", s1, s1, s2), 4))
        ops.append((lambda: pending.append(g.ds_write(vSW, s1, buf * 1024)), 4))
        return ops

    def norm_ops(acc, buf, hw, hoff):
        st = vLN[0:8]
        y = vLN[8:16]
        e = vLN[16:24]
        pk = vLN[24:28]
        a_, b_, m_, v_ = vT[2], vT[3], vT[4], vT[5]
        tk = {}
        ops = []

        def rd():
            tk[0] = g.ds_read(st[0:4], vSR, buf * 1024)
            tk[1] = g.ds_read(st[4:8], vSR, buf * 1024 + 512)
        ops.append((rd, 24))

        def red():
            g.need(tk[0], tk[1])
            g.valu("v_add_f32", st[0], st[0], st[1])
            g.valu("v_add_f32", st[4], st[4], st[5])
            g.valu("v_add_f32", st[2], st[2], st[3])
            g.valu("v_add_f32", st[6], st[6], st[7])
            g.valu("v_add_f32", st[0], st[0], st[2])
            g.valu("v_add_f32", st[4], st[4], st[6])
        ops.append((red, 28))

        def fin():
            g.valu("v_mul_f32", m_, sINV, st[0])
            g.valu("v_mul_f32", v_, sINV, st[4])
            g.valu("v_fma_f32", v_, "-" + str(m_), m_, v_)
            g.valu("v_max_f32", v_, 0, v_)
            g.valu("v_add_f32", v_, sEPS, v_)
            g.valu("v_rsq_f32", v_, v_)
            g.valu("v_mul_f32", a_, sL2E, v_)
            g.valu("v_mul_f32", b_, m_, a_)
        ops.append((fin, 40))
        for h in range(2):
            for i in range(8):
                ops.append((lambda i=i, h=h: g.valu("v_fma_f32", y[i], acc[8 * h + i], a_, "-" + str(b_)), 5))
            for i in range(8):
                ops.append((lambda i=i: g.valu("v_exp_f32", e[i], "-" + str(y[i])), 8))
            for i in range(8):
                ops.append((lambda i=i: g.valu("v_fma_f32", e[i], e[i], sL2E, sL2E), 5))
            for i in range(8):
                ops.append((lambda i=i: g.valu("v_rcp_f32", e[i], e[i]), 8))
            for i in range(8):
                ops.append((lambda i=i: g.valu("v_mul_f32", y[i], y[i], e[i]), 4))
            for i in range(4):
                ops.append((lambda i=i: g.valu("v_cvt_pk_bf16_f32", pk[i], y[2 * i], y[2 * i + 1]), 5))
            ops.append((lambda h=h: pending.append(g.ds_write(hw, pk, hoff + 32 * h)), 12))
        return ops

    wp = {"tr": 0, "iss": 0}

    def w_issue_ops(n, tmin=None):
        ops = []
        for _ in range(n):
            k = wp["iss"]
            if k >= NG:
                break
            assert k - NGS < wp["tr"], "ring overflow"

            def fn(k=k):
                if k >= NGS:
                    g.need(wtr[3 * (k - NGS) + 2])
                issue_WG(k)
            ops.append((fn, 44) + ((tmin,) if tmin is not None else ()))
            wp["iss"] += 1
        return ops

    def w_tr_ops(n, tmin=None):
        ops = []
        for _ in range(n):
            k = wp["tr"]
            if k >= wp["iss"]:
                break
            ops.append((lambda k=k: tr_WG(k), 40) + ((tmin,) if tmin is not None else ()))
            wp["tr"] += 1
        return ops

    def pump_ops(n, lag=1, tmin=None):
        ops = []
        for _ in range(n):
            if wp["tr"] >= NG:
                break
            ops += w_tr_ops(1, tmin)
            while wp["iss"] < NG and wp["iss"] - NGS <= wp["tr"] - 1 - lag:
                ops += w_issue_ops(1, tmin)
        return ops

    def conv_item(p, dj, s, epoch):
        mf, fs = [], []
        for di in range(3):
            j = p - di
            if 0 <= j <= 3:
                f = widx[(di, dj, s)]
                fs.append(f)
                mf.append((vAcc[j], wreg(f), vAcc[j]))
        return Item(mf, bsrc=(vB, p * RP + dj * PP + 32 * s), epoch=epoch, pre=(lambda fs=fs: [wtr[f] for f in fs]))

    xftok = {}

    def xf_ops(j):
        def f():
            g.salu("s_add_u32", "m0", sCDMA, xfbuf(j))
            xftok[j] = [g.dma(vC0, sXF, sT[j], flags=FX), g.dma(vC1, sXF, sT[j], off=1024, flags=FX)]
        return [(f, 24)]

    def z2_pre_ops(j):
        ops = []
        for h in range(2):
            for i in range(4):
                ops.append((lambda i=i, h=h: g.valu("v_cvt_pk_bf16_f32", vPK[4 * h + i], vAcc[j][8 * h + 2 * i],
                                                    vAcc[j][8 * h + 2 * i + 1]), 5))
            ops.append((lambda h=h: pending.append(g.ds_write(vXa[h], vPK[4 * h:4 * h + 4], ebuf(j))), 12))
        return ops

    def z2_items(j, epoch):
        its = []
        for s in range(8):
            C = 0 if s == 0 else vAcc2
            its.append(Item([(vAcc2, vWZ[s], C)], bsrc=(vCs[s], ebuf(j)), epoch=epoch, pre=(lambda s=s: [wtr[72 + s]])))
        for s in range(2):
            its.append(Item([(vAcc2, vID[s], vAcc2)], bsrc=(vXa[s], xfbuf(j)), epoch=epoch))
        return its

    def z2_post_ops(j):
        ops = []
        for h in range(2):
            for i in range(4):
                ops.append((lambda i=i, h=h: g.valu("v_cvt_pk_bf16_f32", vPO[4 * h + i], vAcc2[8 * h + 2 * i],
                                                    vAcc2[8 * h + 2 * i + 1]), 5))
            ops.append((lambda h=h: pending.append(g.ds_write(vXa[h], vPO[4 * h:4 * h + 4], xfbuf(j))), 12))
        return ops

    def out_ops(j):
        tk = {}
        ops = []

        def rd():
            tk[0] = g.ds_read(vOS[0:4], vLIN, xfbuf(j))
            tk[1] = g.ds_read(vOS[4:8], vLIN, xfbuf(j) + 1024)
        ops.append((rd, 24))

        def st0():
            g.need(tk[0])
            g.bstore(vOS[0:4], vC0, sOUT, sT[j], flags=FS)

        def st1():
            g.need(tk[1])
            g.bstore(vOS[4:8], vC1, sOUT, sT[j], off=1024, flags=FS)
        ops.append((lambda: None, 24))
        ops.append((st0, 12))
        ops.append((st1, 12))
        return ops

    accs = {0: vAcc[0], 1: vAcc[1], 2: vAcc[2], 3: vAcc[3], 4: vAcc2, 5: vAcc3}
    hws = {0: (vHW, 0), 1: (vHW, RP), 2: (vHW, 2 * RP), 3: (vHW, 3 * RP), 4: (vHWA, 0), 5: (vHWB, 0)}
    ES = cfg.get("early_s", NS // 3)
    dj0 = DJ[0]
    done_groups = set()

    def groups(ps, djs, ss, epoch):
        out = []
        for p in ps:
            for dj in djs:
                for s in ss:
                    if (p, dj, s) in done_groups:
                        continue
                    done_groups.add((p, dj, s))
                    out.append(conv_item(p, dj, s, epoch))
        return out

    ORDER = cfg.get("order", [0, 1, 4, 2, 3, 5])
    stepof = {t: k for k, t in enumerate(ORDER)}
    WBATCH = cfg.get("wbatch", NGS)
    EARLY = cfg.get("early", [0, 0, 0, 16, 32, 48])
    seq = [(dj, s) for dj in DJ for s in range(8)]

    def tiles_for(p, dj):
        need = set()
        for r in (p, p + 4):
            if r == 0:
                need |= {4, 5} if dj > 0 else {4}
            elif r == 9:
                need.add(5)
            else:
                need.add((r - 1) % 4)
                if dj != 1:
                    need.add(4)
        return need

    def first_step(p, dj):
        k = max(stepof[t] + 2 for t in tiles_for(p, dj))
        for di in range(3):
            j = p - di
            if 0 <= j <= 3:
                k = max(k, stepof[j] + 2)
        return k

    def vis_epoch(p, dj):
        return max(stepof[t] + 3 for t in tiles_for(p, dj))

    def issue_tile(t):
        if t < 4:
            issue_T(t)
        else:
            issue_R(t)
    GPS = cfg.get("gps", [2, 4, 4, 4, 4, 4])
    ACTF = cfg.get("actf", 0.75)
    for k in range(6):
        t = ORDER[k]
        have = wp["tr"]
        acts = []
        if 1 <= k <= 3:
            acts = [(lambda k=k, i=i: act_piece(ORDER[k + 2], i), 24) for i in range(4)]
        if k == 4:
            acts = xf_ops(0) + xf_ops(1)
        if k == 5:
            acts = xf_ops(2) + xf_ops(3)
        wb = []
        tr0 = []
        if cfg.get("batch"):
            tr0 = w_tr_ops(min(wp["iss"], 21) - wp["tr"])
            have = wp["tr"]
            for _ in range(GPS[k]):
                if wp["iss"] - wp["tr"] < NGS:
                    wb.append(w_issue_ops(1))
        else:
            for _ in range(GPS[k]):
                b = []
                if wp["iss"] - wp["tr"] >= NGS and wp["tr"] < 21:
                    b += w_tr_ops(1)
                if wp["iss"] - wp["tr"] < NGS:
                    b += w_issue_ops(1)
                wb.append(b)
        z = z1_items(t, accs[t], k + 1)
        rest = []
        budget = EARLY[k]
        for p in (1, 2, 3, 4):
            for gi, (dj, s_) in enumerate(seq[:have]):
                if first_step(p, dj) <= k and (p, dj, s_) not in done_groups and budget > 0:
                    rest += groups([p], [dj], [s_], vis_epoch(p, dj))
                    budget -= len(rest[-1].mf)
        Q.extend(z + rest)
        if k == 0:
            sync(*z1dma, *atok[t])
            for s in range(8):
                g.ds_tr(vWZ[s][0:2], vTZ, s * 4096)
                z1tr[s] = g.ds_tr(vWZ[s][2:4], vTZ, s * 4096 + 1024)
            pending.append(z1tr[7])
        else:
            sync(*atok[t])
        stamp(f"step{k}")
        tp = ORDER[k - 1] if k else None
        nrm = norm_ops(accs[tp], (k - 1) & 1, *hws[tp]) if k else []
        st = stats_ops(accs[t], k & 1)
        base = nrm + st
        tot = sum(f[1] for f in base)
        marks = []
        if cfg.get("batch"):
            f0, f1, f2 = cfg["batch"]
            marks.append((0.0, tr0))
            for i, b in enumerate(wb):
                marks.append((f0 + (f1 - f0) * i / max(1, len(wb)), b))
            for i, a in enumerate(acts):
                marks.append((f1 + (f2 - f1) * i / max(1, len(acts)), [a]))
        else:
            for i, a in enumerate(acts):
                marks.append((ACTF * i / max(1, len(acts)), [a]))
            for i, b in enumerate(wb):
                marks.append(((i + 0.5) / max(1, len(wb)), b))
        marks.sort(key=lambda m: m[0])
        if cfg.get("fine") == k:
            nm = []
            for mi_, (fr, ops_) in enumerate(marks):
                nm.append((fr, [(lambda mi_=mi_: stamp(f"b{mi_}"), 0)] + list(ops_) + [(lambda mi_=mi_: stamp(f"e{mi_}"), 0)]))
            marks = nm
        fill = []
        acc_c = 0
        mi = 0
        nstat0 = None
        for idx, op in enumerate(base):
            while mi < len(marks) and marks[mi][0] * tot <= acc_c:
                fill += marks[mi][1]; mi += 1
            if idx == len(nrm):
                nstat0 = len(fill)
            fill.append(op)
            acc_c += op[1]
        for m in marks[mi:]:
            fill += m[1]
        if rest:
            kq = min(nstat0, len(fill) * 10 // (10 + sum(len(i.mf) for i in rest)))
            kq = max(kq, len(tr0))
            run(z, fill[:kq])
            run(rest, fill[kq:])
        else:
            run(z, fill[:nstat0])
            run([], fill[nstat0:])

    sync()
    stamp("step6")
    ep6 = state["epoch"]
    dW = cfg.get("dW", 240)
    tRB = cfg.get("tRB", 900)
    have = wp["tr"]
    avail = {}
    for k, key in enumerate(seq):
        avail[key] = 0 if k < have else max((k - have + 1) * dW + 120, tRB + 180 if k >= 21 else 0)
    prio = [1, 2, 0, 3, 4, 5]
    todo = [(p, dj, s) for p in prio for (dj, s) in seq if (p, dj, s) not in done_groups]
    needM = {j: {(p, dj, s) for p in (j, j + 1, j + 2) for (dj, s) in seq} - done_groups for j in range(4)}
    tW2 = max(max(0, 24 - have) * dW + 3 * dW + 120, tRB + 180)
    events = []
    t = 0
    rb_done = False
    z2_ready = {}
    z2_started = set()
    zorder = []
    z2_last = -10**9
    while todo or len(z2_started) < 4:
        if not rb_done and t >= tRB:
            events.append(("rb", t))
            rb_done = True
        cand = None
        for j in range(4):
            if j in z2_ready and j not in z2_started and t >= z2_ready[j] and t >= tW2 and t >= z2_last + 320 + 128:
                cand = ("z2", j)
                break
        if cand is None:
            for key in todo:
                p, dj, s = key
                if avail[(dj, s)] <= t and (rb_done or p not in (0, 5)):
                    cand = ("g", key)
                    break
        if cand is None:
            t += 32
            if not todo and not rb_done:
                events.append(("rb", t)); rb_done = True
            continue
        events.append(cand + (t,))
        if cand[0] == "z2":
            z2_started.add(cand[1])
            z2_last = t
            t += 320
        else:
            key = cand[1]
            todo.remove(key)
            p = key[0]
            t += 32 * len([di for di in range(3) if 0 <= p - di <= 3])
            for j in range(4):
                needM[j].discard(key)
                if not needM[j] and j not in z2_ready:
                    z2_ready[j] = t + cfg.get("z2lag", 192)
                    events.append(("z2pre", j, t))
    sys.stderr.write(f"modelled main phase {t} cycles; z2 starts {[e[2] for e in events if e[0]=='z2']}\n")

    items = []
    fillers = []
    epochs = {}
    fillers += [(f[0], f[1], 0) for f in norm_ops(accs[5], 5 & 1, *hws[5])]
    pump_timed = w_issue_ops(NGS - (wp["iss"] - wp["tr"]), tmin=0)
    for k in range(have, NG):
        tm_ = (k - have + 1) * dW - 60
        if k >= 21:
            tm_ = max(tm_, tRB)
        pump_timed += pump_ops(1, tmin=tm_)
    xf_timed = []
    timed = []
    for f in pump_timed + xf_timed:
        timed.append(f)
    last_post = None
    for ev in events:
        if ev[0] == "g":
            p, dj, s = ev[1]
            ep = ep6 if p not in (0, 5) else (lambda: epochs.get("rb"))
            items.append(conv_item(p, dj, s, ep))
        elif ev[0] == "rb":
            def f_rb():
                sync()
                epochs["rb"] = state["epoch"]
                stamp("step7")
            items.append(Item([], fn=f_rb))
            items[-1].kind = ("rb", ev[1])
        elif ev[0] == "z2pre":
            j = ev[1]
            timed += [(f[0], f[1], ev[2]) for f in z2_pre_ops(j)]
        elif ev[0] == "z2":
            j = ev[1]

            def f_z(j=j):
                sync(*xftok[j])
                epochs[("z", j)] = state["epoch"]
                stamp(f"z2_{j}")
            it = Item([], fn=f_z)
            it.kind = ("z2sync", ev[2], j)
            items.append(it)
            items += z2_items(j, (lambda j=j: epochs.get(("z", j))))
            timed += [(f[0], f[1], ev[2] + 320 + 64) for f in z2_post_ops(j)]
            if j > 0:
                timed += [(f[0], f[1], ev[2] + 32) for f in out_ops(zorder[-1])]
            zorder.append(j)
    timed.sort(key=lambda f: f[2])
    allf = fillers + timed
    Q.extend(items)

    fi = 0
    tm = 0
    credit = 0
    per = cfg.get("per", 16)
    for it in items:
        assert Q[qpos["cur"]] is it
        if it.fn is not None:
            tl = it.kind[1]
            while fi < len(allf) and allf[fi][2] <= tl:
                allf[fi][0]()
                fi += 1
            it.fn()
            it.emitted = True
            qpos["cur"] += 1
            continue
        prefetch()
        if it.btok is None:
            raise RuntimeError("B read not issued (epoch?)")
        pre = it.pre() if it.pre else []
        while any(x is None for x in pre):
            allf[fi][0]()
            fi += 1
            pre = it.pre()
        g.need(it.btok, *pre)
        for k, (D, Aop, C) in enumerate(it.mf):
            g.mfma(D, Aop, it.buf, C)
            tm += 32
            c0 = g.cost
            if k == len(it.mf) - 1:
                it.emitted = True
                prefetch()
            credit = min(credit + 24 - (g.cost - c0), 48)
            while fi < len(allf) and credit > 0 and allf[fi][2] <= tm:
                allf[fi][0]()
                credit -= allf[fi][1]
                fi += 1
        qpos["cur"] += 1
    while fi < len(allf):
        allf[fi][0]()
        fi += 1
    sync()
    for f in out_ops(zorder[-1]):
        f[0]()
    stamp("end")
    if STAMPS:
        g.raw("  s_waitcnt vmcnt(0)")
        g.raw("  s_memtime s[74:75]")
        g.raw("  s_memrealtime s[98:99]")
        g.raw("  s_waitcnt lgkmcnt(0)")
        n = len(stamps)
        g.raw(f"  s_mov_b32 s{76 + n}, s74")
        n += 1
        stamps.append("drained")
        g.raw("  s_lshl_b32 s3, s2, 2")
        g.raw("  s_add_u32 s3, s3, s52")
        g.raw("  s_lshl_b32 s3, s3, 7")
        g.raw("  v_mov_b32 v0, 0")
        for i in range(n):
            g.raw(f"  v_mov_b32 v1, s{76 + i}")
            g.raw(f"  buffer_store_dword v1, v0, s[48:51], s3 offen offset:{4 * i}")
        g.raw("  v_mov_b32 v1, s96")
        g.raw(f"  buffer_store_dword v1, v0, s[48:51], s3 offen offset:{4 * 30}")
        g.raw("  v_mov_b32 v1, s98")
        g.raw(f"  buffer_store_dword v1, v0, s[48:51], s3 offen offset:{4 * 31}")
    g.raw("L_end:")
    g.raw("  s_endpgm")
    tail = """.section .rodata,"a"
.p2align 6
.amdhsa_kernel standalone__controlnet__diffusion_kernel
  .amdhsa_next_free_vgpr 512
  .amdhsa_next_free_sgpr 102
  .amdhsa_accum_offset 256
  .amdhsa_group_segment_fixed_size 0
  .amdhsa_kernarg_size 72
  .amdhsa_user_sgpr_count 2
  .amdhsa_user_sgpr_kernarg_segment_ptr 1
  .amdhsa_system_sgpr_workgroup_id_x 1
.end_amdhsa_kernel
"""
    sys.stderr.write(f"est issue cycles {g.cost}, nops {g.nops}, lines {len(g.lines)}, NS {NS}\n")
    if STAMPS:
        open(cfg.get("_out", "x") + ".names", "w").write(",".join(stamps))
    return "\n".join(hdr) + "\n" + g.text() + tail


if __name__ == "__main__":
    import json
    out = sys.argv[1]
    cfg = json.loads(sys.argv[2]) if len(sys.argv) > 2 else {}
    cfg["_out"] = out
    open(out, "w").write(build(cfg))
```

```python
import sys
from dsl import *

RP = 4928
PP = 272
import os
NSLOT = int(os.environ.get('NSLOT', 4))
AB = 0
HB = AB + NSLOT * 16384
SB = HB + 10 * RP
WB = SB + 2048
NS = (163840 - WB) // 12288 * 3
LDS_BYTES = WB + NS * 4096
assert LDS_BYTES <= 163840
SLOT = {}
def cslot(t): return AB + SLOT[t] * 16384
def xslot(t): return AB + SLOT[t] * 16384 + 8192
if NSLOT == 3:
    def xfbuf(j): return AB + j * 8192
    def ebuf(j): return AB + 2 * 16384 + (j & 1) * 8192
    XF_EPOCH = 6
    DUMMY = AB + 2 * 16384
else:
    def xfbuf(j): return AB + 2 * 16384 + j * 8192
    def ebuf(j): return AB + j * 8192
    XF_EPOCH = 5
    DUMMY = AB

sXF, sX, sC, sOUT, sWZ1, sWZ2, sWC, sWS = (S(20, 4), S(24, 4), S(28, 4), S(32, 4), S(36, 4), S(40, 4), S(44, 4), S(48, 4))
sW = S(52); sTB = S(53); sRING = S(54); sZ1ST = S(55); sCDMA = S(56); s64w = S(57)
sYM = S(58); sXM = S(59); sY0 = S(60); sX0 = S(61); sL2E = S(62); sINV = S(63); sEPS = S(64); sTBM = S(65)
sT = [S(66), S(67), S(68), S(69)]
sTMP = S(70); sTMP2 = S(71); sTMP3 = S(72); sWO = S(73)

vLIN = V(1); vC0 = V(2); vC1 = V(3); vWS = V(4); vTR = V(5); vTZ = V(6); vB = V(7)
vCs = [V(8 + s) for s in range(8)]
vHW = V(16); vHWA = V(17); vHWB = V(18); vSW = V(19); vSR = V(20); vXa = [V(21), V(22)]
vT = [V(23 + i) for i in range(9)]
NB = 6
vBuf = [V(32 + 4 * i, 4) for i in range(NB)]
vID = [V(56, 4), V(60, 4)]
vRG = {4: [V(64), V(65)], 5: [V(66), V(67)]}
vWD = [V(4), V(92), V(93)]
vWZ2 = [V(4), V(94), V(95)]
vPK = V(68, 8)
vPO = V(76, 8)
vOS = V(84, 8)
vAcc3 = V(96, 16)
vAcc2 = V(112, 16)
vAcc = [V(128 + 16 * j, 16) for j in range(4)]
vWZ = [V(192 + 4 * f, 4) for f in range(8)]
vLN = V(224, 32)


def wreg(f):
    return A(4 * f, 4) if f < 64 else V(224 + 4 * (f - 64), 4)


class Item:
    def __init__(self, mf, bsrc=None, epoch=0, pre=None, fn=None):
        self.mf = mf
        self.bsrc = bsrc
        self.epoch = epoch
        self.pre = pre
        self.fn = fn
        self.btok = None
        self.buf = None
        self.emitted = False


def build(cfg):
    g = G()
    hdr = [f"; @launch grid=(256,1,1) block=(256,1,1) lds={LDS_BYTES}",
           '.amdgcn_target "amdgcn-amd-amdhsa--gfx950"', ".text",
           ".globl standalone__controlnet__diffusion_kernel", ".p2align 8",
           ".type standalone__controlnet__diffusion_kernel,@function",
           "standalone__controlnet__diffusion_kernel:"]
    stamps = []
    STAMPS = cfg.get("stamps")

    def stamp(name):
        if not STAMPS:
            return
        if isinstance(STAMPS, list) and name not in STAMPS:
            return
        n = len(stamps)
        assert n < 19
        stamps.append(name)
        sys.stderr.write(f"  stamp {name}: est {g.cost} instrs {len(g.lines)} nops {g.nops}\n")
        g.raw("  s_memtime s[74:75]")
        g.raw("  s_waitcnt lgkmcnt(0)")
        g.done["lg"] = g.issued["lg"]
        g.raw(f"  s_mov_b32 s{76 + n}, s74")
        g.pos += 3

    DJ = cfg.get("dj_order", (1, 0, 2))
    for k_, t_ in enumerate(cfg.get("order", [0, 1, 4, 2, 3, 5])):
        SLOT[t_] = k_ % NSLOT
    FA = cfg.get("fa", " nt"); FX = cfg.get("fx", " nt"); FS = cfg.get("fs", " nt"); FWARM = cfg.get("fwarm", ""); FW = cfg.get("fw", ""); FZ = cfg.get("fz", "")

    g.sop("s_cmp_ge_u32 s2, 256", r={"s2"})
    g.sop("s_cbranch_scc1 L_end")
    g.raw("  s_load_dwordx16 s[4:19], s[0:1], 0")
    if STAMPS:
        g.raw("  s_load_dwordx2 s[48:49], s[0:1], 64")
        g.raw("  s_memrealtime s[96:97]")
    g.pos += 2
    stamp("start")
    L = V(224); I = V(225); HF = V(227); t0 = V(228); t1 = V(229); t2 = V(226); t3 = V(230); vZS = V(231)
    vL16 = V(232)
    g.valu("v_and_b32", L, 63, V(0))
    g.valu("v_lshrrev_b32", t0, 6, V(0))
    g.readfirstlane(sW, t0)
    g.valu("v_and_b32", I, 31, V(0))
    g.valu("v_bfe_u32", HF, V(0), 5, 1)
    if cfg.get("codepf"):
        nl = cfg["codepf"]
        g.raw("  s_getpc_b64 s[90:91]")
        g.raw("L_pc:")
        g.pos += 1
        g.salu("s_lshr_b32", sTMP, "s2", 3)
        g.salu("s_lshl_b32", sTMP, sTMP, 2)
        g.salu("s_add_u32", sTMP, sTMP, sW)
        g.salu("s_mul_i32", sTMP, sTMP, nl * 128)
        g.valu("v_and_b32", t0, nl - 1, V(0))
        g.valu("v_lshlrev_b32", t0, 7, t0)
        g.valu("v_add_u32", t0, sTMP, t0)
        g.valu("v_min_u32", t0, "L_end-L_pc", t0)
        g.valu("v_mov_b32", t1, S(91))
        g._emit(f"v_add_co_u32 {t0}, vcc, s90, {t0}", "valu", t0.regs() | {"vcc"}, t0.regs())
        g._emit(f"v_addc_co_u32 {t1}, vcc, 0, {t1}, vcc", "valu", t1.regs() | {"vcc"}, t1.regs() | {"vcc"})
        g.raw("  global_load_dword a235, v[228:229], off")
        g.pos += 1
        g._tok("vm")
    g.salu("s_and_b32", sTMP, "s2", 7)
    g.salu("s_lshl_b32", sTMP, sTMP, 5)
    g.salu("s_lshr_b32", sTMP2, "s2", 3)
    g.salu("s_add_u32", sTMP, sTMP, sTMP2)
    g.salu("s_lshr_b32", sTMP3, sTMP, 3)
    g.salu("s_lshl_b32", sTB, sTMP3, 18)
    g.salu("s_and_b32", sY0, sTMP3, 15)
    g.salu("s_lshl_b32", sY0, sY0, 3)
    g.salu("s_and_b32", sX0, sTMP, 7)
    g.salu("s_lshl_b32", sTMP3, sX0, 12)
    g.salu("s_lshl_b32", sX0, sX0, 4)
    g.salu("s_add_u32", sTB, sTB, sTMP3)
    g.salu("s_mov_b32", sT[0], sTB)
    for j in range(1, 4):
        g.salu("s_add_u32", sT[j], sTB, j * 32768)
    g.salu("s_lshl_b32", sCDMA, sW, 11)
    g.salu("s_lshl_b32", s64w, sW, 6)
    g.salu("s_lshr_b32", sTMP, sW, 1)
    g.salu("s_lshl_b32", sTMP, sTMP, 17)
    g.salu("s_and_b32", sTMP2, sW, 1)
    g.salu("s_lshl_b32", sTMP2, sTMP2, 3)
    g.valu("v_lshrrev_b32", t3, 4, L)
    g.valu("v_add_u32", t0, sTMP2, t3)
    g.valu("v_and_b32", t1, 15, L)
    g.valu("v_xor_b32", t2, t1, t0)
    g.valu("v_lshlrev_b32", t2, 4, t2)
    g.valu("v_lshl_add_u32", t2, t0, 8, t2)
    g.valu("v_add_u32", vC0, sTMP, t2)
    g.valu("v_add_u32", t0, 4, t0)
    g.valu("v_xor_b32", t2, t1, t0)
    g.valu("v_lshlrev_b32", t2, 4, t2)
    g.valu("v_lshl_add_u32", t2, t0, 8, t2)
    g.valu("v_add_u32", t2, sTMP, t2)
    g.valu("v_subrev_u32", vC1, 1024, t2)
    g.valu("v_bfe_u32", t0, L, 2, 2)
    g.valu("v_xor_b32", t0, t0, t3)
    g.valu("v_lshlrev_b32", t0, 6, t0)
    g.valu("v_lshl_add_u32", t0, t3, 8, t0)
    g.valu("v_and_b32", t1, 3, L)
    g.valu("v_lshl_add_u32", vZS, t1, 4, t0)
    g.valu("v_lshrrev_b32", t0, 2, L)
    g.valu("v_lshlrev_b32", t0, 8, t0)
    g.valu("v_lshl_add_u32", t0, t1, 4, t0)
    g.valu("v_add_u32", vWS, s64w, t0)
    g.valu("v_add_u32", vWD[1], 98304 - 1024, vWS)
    g.valu("v_add_u32", vWD[2], 2 * (98304 - 1024), vWS)
    g.valu("v_add_u32", vWZ2[1], 4096 - 1024, vWS)
    g.valu("v_add_u32", vWZ2[2], 2 * (4096 - 1024), vWS)
    g.valu("v_lshlrev_b32", vL16, 4, L)
    g.salu("s_mul_i32", sTMP3, sW, NS * 1024)
    g.salu("s_add_u32", sRING, sTMP3, WB)
    g.salu("s_lshl_b32", sZ1ST, sW, 13)
    g.raw("  s_waitcnt lgkmcnt(0)")
    g.pos += 1

    def mk_srd(srd, p, n):
        g.salu("s_mov_b32", srd[0], S(p))
        g.salu("s_mov_b32", srd[1], S(p + 1))
        g.salu("s_mov_b32", srd[2], n)
        g.salu("s_mov_b32", srd[3], "0x00020000")
    mk_srd(sC, 8, 8388608)
    mk_srd(sX, 6, 8388608)

    atok = {}
    mstate = {"m0": None}

    def issue_T(j):
        g.salu("s_add_u32", "m0", sCDMA, cslot(j))
        a = g.dma(vC0, sC, sT[j], flags=FA)
        b = g.dma(vC1, sC, sT[j], off=1024, flags=FA)
        g.salu("s_add_u32", "m0", sCDMA, xslot(j))
        c = g.dma(vC0, sX, sT[j], flags=FA)
        d = g.dma(vC1, sX, sT[j], off=1024, flags=FA)
        atok[j] = [a, b, c, d]

    def act_piece(t, i):
        srd, base = ((sC, cslot(t)), (sX, xslot(t)))[i >> 1]
        g.salu("s_add_u32", "m0", sCDMA, base)
        mstate["m0"] = None
        if t < 4:
            tok = g.dma((vC0, vC1)[i & 1], srd, sT[t], off=1024 * (i & 1), flags=FA)
        else:
            tok = g.dma(vRG[t][i & 1], srd, 0, off=1024 * (i & 1), flags=FA)
        atok.setdefault(t, []).append(tok)

    def issue_R(t):
        toks = []
        for srd, base in ((sC, cslot(t)), (sX, xslot(t))):
            g.salu("s_add_u32", "m0", sCDMA, base)
            toks.append(g.dma(vRG[t][0], srd, 0, flags=FA))
            toks.append(g.dma(vRG[t][1], srd, 0, off=1024, flags=FA))
        atok[t] = toks

    worder = []
    for dj in DJ:
        for s in range(8):
            for di in range(3):
                worder.append((di, dj, s))
    widx = {k: f for f, k in enumerate(worder)}
    NW = 80
    wdma = [None] * NW
    wtr = [None] * NW

    def wunit_src(f):
        if f < 72:
            di, dj, s = worder[f]
            return sWC, ((di * 3 + dj) * 128 + 16 * s) * 256
        return sWZ2, (f - 72) * 4096

    def wunit_dst(f):
        return wreg(f) if f < 72 else vWZ[f - 72]

    NG = 27
    NGS = NS // 3

    def issue_WG(k):
        g.salu("s_add_u32", "m0", sRING, (k % NGS) * 3072)
        f0 = 3 * k
        srd, off = wunit_src(f0)
        g.salu("s_mov_b32", sTMP, off)
        for i in range(3):
            f = f0 + i
            if f >= NW:
                break
            vo = vWD[i] if f < 72 else vWZ2[i]
            wdma[f] = g.dma(vo, srd, sTMP, off=1024 * i, flags=FW)

    def tr_WG(k):
        fs = [f for f in range(3 * k, 3 * k + 3) if f < NW]
        g.need(wdma[fs[-1]])
        for i, f in enumerate(fs):
            d = wunit_dst(f)
            o = (k % NGS) * 3072 + 1024 * i
            g.ds_tr(d[0:2], vTR, o)
            wtr[f] = g.ds_tr(d[2:4], vTR, o + 256)

    z1dma = []

    def issue_wz1(hs=(0, 1)):
        for h in hs:
            g.salu("s_add_u32", "m0", sZ1ST, HB + h * 4096)
            g.salu("s_add_u32", sTMP, sZ1ST, h * 4096)
            for m in range(4):
                z1dma.append(g.dma(vZS, sWZ1, sTMP, off=m * 1024, flags=FZ))

    def issue_warm():
        g.salu("s_lshr_b32", sTMP2, "s2", 3)
        g.salu("s_mul_i32", sTMP, sTMP2, 9216)
        g.salu("s_lshl_b32", sTMP3, sW, 10)
        g.salu("s_add_u32", sTMP, sTMP, sTMP3)
        g.bload(A(240, 4), vL16, sWC, sTMP, flags=FWARM)
        g.salu("s_add_u32", sTMP, sTMP, 4096)
        g.bload(A(244, 4), vL16, sWC, sTMP, flags=FWARM)
        g.valu("v_and_b32", t0, 0xf0, vL16)
        g.salu("s_mul_i32", sTMP, sTMP2, 9216)
        g.salu("s_lshl_b32", sTMP3, sW, 8)
        g.salu("s_add_u32", sTMP, sTMP, sTMP3)
        g.salu("s_add_u32", sTMP, sTMP, 8192)
        g.bload(A(248, 4), t0, sWC, sTMP, flags=FWARM)
        g.salu("s_lshl_b32", sTMP, sTMP2, 10)
        g.salu("s_add_u32", sTMP, sTMP, sTMP3)
        g.bload(A(252, 4), t0, sWZ2, sTMP, flags=FWARM)
        if cfg.get("warm_z1", True):
            g.bload(A(236, 4), t0, sWZ1, sTMP, flags=FWARM)

    vBIG = V(233)

    def ring_coords(tile, idx, hr, hc, tmp):
        if tile == 4:
            g.valu("v_lshrrev_b32", hr, 1, idx)
            g.valu("v_add_u32", hr, 1, hr)
            g.valu("v_and_b32", hc, 1, idx)
            g.valu("v_mul_u32_u24", hc, 17, hc)
            g.valu("v_subrev_u32", tmp, 16, idx)
            g.vcmp("v_cmp_gt_u32", 16, idx)
            g.cndmask(hr, 0, hr)
            g.cndmask(hc, tmp, hc)
        else:
            g.valu("v_subrev_u32", tmp, 2, idx)
            g.valu("v_mov_b32", hr, 9)
            g.vcmp("v_cmp_gt_u32", 18, idx)
            g.cndmask(hr, 0, hr)
            g.cndmask(hc, tmp, idx)

    def setup_ring(tile):
        hr, hc, tmp, idx, sw = V(234), V(235), V(236), V(237), V(238)
        for e in range(2):
            dst = vRG[tile][e]
            g.salu("s_lshl_b32", sTMP, sW, 3)
            g.salu("s_add_u32", sTMP, sTMP, 4 * e)
            g.valu("v_lshrrev_b32", idx, 4, L)
            g.valu("v_add_u32", idx, sTMP, idx)
            ring_coords(tile, idx, hr, hc, tmp)
            g.valu("v_lshlrev_b32", dst, 15, hr)
            g.valu("v_lshl_add_u32", dst, hc, 8, dst)
            g.valu("v_add_u32", dst, sTBM, dst)
            g.valu("v_xor_b32", sw, idx, L)
            g.valu("v_and_b32", sw, 15, sw)
            g.valu("v_lshl_add_u32", dst, sw, 4, dst)
            if e == 1:
                g.valu("v_subrev_u32", dst, 1024, dst)
            g.valu("v_add_u32", tmp, sYM, hr)
            g.vcmp("v_cmp_gt_u32", 128, tmp)
            g.cndmask(dst, vBIG, dst)
            g.valu("v_add_u32", tmp, sXM, hc)
            g.vcmp("v_cmp_gt_u32", 128, tmp)
            g.cndmask(dst, vBIG, dst)
            if tile == 5:
                g.vcmp("v_cmp_gt_u32", 20, idx)
                g.cndmask(dst, vBIG, dst)
        ring_coords(tile, I, hr, hc, tmp)
        hw = vHWA if tile == 4 else vHWB
        g.valu("v_mul_u32_u24", hw, RP, hr)
        g.valu("v_mul_u32_u24", tmp, PP, hc)
        g.valu("v_add3_u32", hw, hw, tmp, s64w)
        g.valu("v_lshl_add_u32", hw, HF, 4, hw)
        g.valu("v_add_u32", hw, HB, hw)
        if tile == 5:
            g.valu("v_mov_b32", tmp, DUMMY)
            g.vcmp("v_cmp_gt_u32", 20, I)
            g.cndmask(hw, tmp, hw)

    mk_srd(sWZ1, 10, 32768)
    mk_srd(sWC, 14, 294912)
    mk_srd(sWZ2, 12, 32768)

    def do_issue(ev):
        if ev[0] == "T":
            issue_T(int(ev[1]))
        elif ev == "R4":
            issue_R(4)
        elif ev == "Z":
            issue_wz1()
        elif ev == "Za":
            issue_wz1((0,))
        elif ev == "Zb":
            issue_wz1((1,))
        elif ev == "WARM":
            issue_warm()
        stamp("i" + ev)
    for ev in cfg.get("issue_a", ["T0", "Z"]):
        do_issue(ev)

    mk_srd(sXF, 4, 8388608)
    mk_srd(sOUT, 16, 8388608)
    if STAMPS:
        g.salu("s_mov_b32", sWS[2], "0x10000000")
        g.salu("s_mov_b32", sWS[3], "0x00020000")
    g.valu("v_bfe_u32", t1, L, 4, 1)
    g.valu("v_lshlrev_b32", t0, 5, t1)
    g.valu("v_and_b32", t1, 1, L)
    g.valu("v_lshl_add_u32", t0, t1, 4, t0)
    g.valu("v_bfe_u32", t1, L, 1, 1)
    g.valu("v_lshl_add_u32", t0, t1, 3, t0)
    g.valu("v_bfe_u32", t1, L, 2, 2)
    g.valu("v_lshl_add_u32", t2, HF, 3, t1)
    g.valu("v_lshl_add_u32", t3, t2, 6, t0)
    g.valu("v_add_u32", vTR, sRING, t3)
    g.valu("v_lshl_add_u32", t3, t2, 8, t0)
    g.valu("v_xor_b32", t1, sW, t1)
    g.valu("v_lshl_add_u32", t3, t1, 6, t3)
    g.valu("v_add_u32", vTZ, HB, t3)
    g.valu("v_lshrrev_b32", t0, 4, I)
    g.valu("v_mul_u32_u24", t0, 4 * RP, t0)
    g.valu("v_and_b32", t1, 15, I)
    g.valu("v_mul_u32_u24", t2, PP, t1)
    g.valu("v_lshl_add_u32", t2, HF, 4, t2)
    g.valu("v_add_u32", t0, t0, t2)
    g.valu("v_add_u32", vB, HB, t0)
    g.valu("v_add_u32", t0, RP + PP, vB)
    g.valu("v_add_u32", vHW, s64w, t0)
    g.valu("v_xor_b32", t0, HF, t1)
    g.valu("v_lshlrev_b32", t0, 4, t0)
    g.valu("v_lshl_add_u32", vCs[0], I, 8, t0)
    for s in range(1, 8):
        g.valu("v_xor_b32", vCs[s], s << 5, vCs[0])
    g.valu("v_xor_b32", vXa[0], s64w, vCs[0])
    g.valu("v_xor_b32", vXa[1], 32, vXa[0])
    g.valu("v_add_u32", vLIN, sCDMA, vL16)
    g.salu("s_lshl_b32", sTMP, sW, 2)
    g.salu("s_add_u32", sTMP, sTMP, SB)
    g.valu("v_add_u32", vSW, sTMP, vL16)
    g.valu("v_lshlrev_b32", t0, 4, I)
    g.valu("v_add_u32", vSR, SB, t0)
    g.valu("v_bfe_u32", t0, I, 3, 1)
    g.valu("v_and_b32", t1, 3, I)
    g.valu("v_lshl_add_u32", t0, t0, 2, t1)
    g.valu("v_and_b32", t1, 1, t0)
    g.valu("v_lshlrev_b32", t1, 4, t1)
    g.salu("s_mov_b32", sTMP, "0x3f80")
    g.valu("v_lshlrev_b32", t1, t1, sTMP)
    g.valu("v_lshrrev_b32", t0, 1, t0)
    g.valu("v_lshrrev_b32", t2, 4, I)
    g.valu("v_lshl_add_u32", t0, t2, 2, t0)
    g.valu("v_bfe_u32", t2, I, 2, 1)
    g.valu("v_mov_b32", t3, 63)
    g.vcmp("v_cmp_eq_u32", t2, HF)
    g.cndmask(t0, t3, t0)
    for n in range(8):
        g.vcmp("v_cmp_eq_u32", n, t0)
        g.cndmask(V(56 + n), 0, t1)
    g.salu("s_mov_b32", sL2E, "0x3fb8aa3b")
    g.salu("s_mov_b32", sINV, "0x3c000000")
    g.salu("s_mov_b32", sEPS, "0x3727c5ac")
    g.salu("s_sub_u32", sTBM, sTB, 32768 + 256)
    g.salu("s_sub_u32", sYM, sY0, 1)
    g.salu("s_sub_u32", sXM, sX0, 1)
    g.valu("v_mov_b32", vBIG, "0x7f000000")
    setup_ring(4)
    setup_ring(5)
    stamp("setup")
    for ev in cfg.get("issue_b", ["T1", "WARM", "T2" if cfg.get("order", [0, 1, 4, 2, 3, 5])[2] == 2 else "R4"]):
        do_issue(ev)
    stamp("issued")

    state = {"epoch": 0, "nread": 0}
    Q = []
    qpos = {"cur": 0, "pf": 0}
    reads_emitted = []

    def prefetch(depth=NB - 1):
        while qpos["pf"] < len(Q):
            it = Q[qpos["pf"]]
            if it.bsrc is None:
                if it.fn is not None and not it.emitted:
                    pass
                qpos["pf"] += 1
                continue
            ep = it.epoch() if callable(it.epoch) else it.epoch
            if ep is None or ep > state["epoch"]:
                break
            n = state["nread"]
            if n >= NB and not reads_emitted[n - NB].emitted:
                break
            ahead = sum(1 for x in reads_emitted[-NB:] if not x.emitted)
            if ahead >= depth:
                break
            it.buf = vBuf[n % NB]
            it.btok = g.ds_read(it.buf, it.bsrc[0], it.bsrc[1])
            reads_emitted.append(it)
            state["nread"] += 1
            qpos["pf"] += 1

    def run(items, fillers, min_budget=12, spread=True):
        nm = sum(len(it.mf) for it in items)
        tot = sum(f[1] for f in fillers)
        per = max(min_budget, tot / nm if (nm and spread) else 0)
        fi = 0
        credit = 0
        tm = 0
        for it in items:
            assert Q[qpos["cur"]] is it
            if it.fn is not None:
                it.fn()
                it.emitted = True
                qpos["cur"] += 1
                continue
            prefetch()
            if it.btok is None:
                raise RuntimeError("B read not issued (epoch?)")
            pre_ = it.pre() if it.pre else []
            assert all(x is not None for x in pre_), "W not pumped"
            g.need(it.btok, *pre_)
            for k, (D, Aop, C) in enumerate(it.mf):
                g.mfma(D, Aop, it.buf, C)
                tm += 32
                if k == len(it.mf) - 1:
                    it.emitted = True
                    prefetch()
                credit = min(credit + per, 2 * per)
                while fi < len(fillers) and credit > 0:
                    f = fillers[fi]
                    if len(f) > 2 and f[2] > tm:
                        break
                    f[0]()
                    credit -= f[1]
                    fi += 1
            qpos["cur"] += 1
        while fi < len(fillers):
            fillers[fi][0]()
            fi += 1

    pending = []

    def sync(*toks):
        g.need(*toks, *pending)
        pending.clear()
        g.barrier()
        state["epoch"] += 1

    z1tr = {}

    def z1_items(t, acc, epoch):
        its = []
        for s in range(8):
            C = 0 if s == 0 else acc
            its.append(Item([(acc, vWZ[s], C)], bsrc=(vCs[s], cslot(t)), epoch=epoch, pre=(lambda s=s: [z1tr[s]])))
        for s in range(2):
            its.append(Item([(acc, vID[s], acc)], bsrc=(vXa[s], xslot(t)), epoch=epoch))
        return its

    def stats_ops(acc, buf):
        s1, s2 = vT[0], vT[1]
        ops = []
        ops.append((lambda: g.valu("v_add_f32", s1, acc[0], acc[1]), 4))
        ops.append((lambda: g.valu("v_mul_f32", s2, acc[0], acc[0]), 4))
        ops.append((lambda: g.valu("v_fmac_f32", s2, acc[1], acc[1]), 4))
        for i in range(2, 16):
            ops.append((lambda i=i: g.valu("v_add_f32", s1, s1, acc[i]), 4))
            ops.append((lambda i=i: g.valu("v_fmac_f32", s2, acc[i], acc[i]), 4))
        ops.append((lambda: g.permlane32_swap(s1, s2), 8))
        ops.append((lambda: g.valu("v_add_f32", s1, s1, s2), 4))
        ops.append((lambda: pending.append(g.ds_write(vSW, s1, buf * 1024)), 4))
        return ops

    def norm_ops(acc, buf, hw, hoff):
        st = vLN[0:8]
        y = vLN[8:16]
        e = vLN[16:24]
        pk = vLN[24:28]
        a_, b_, m_, v_ = vT[2], vT[3], vT[4], vT[5]
        tk = {}
        ops = []

        def rd():
            tk[0] = g.ds_read(st[0:4], vSR, buf * 1024)
            tk[1] = g.ds_read(st[4:8], vSR, buf * 1024 + 512)
        ops.append((rd, 24))

        def red():
            g.need(tk[0], tk[1])
            g.valu("v_add_f32", st[0], st[0], st[1])
            g.valu("v_add_f32", st[4], st[4], st[5])
            g.valu("v_add_f32", st[2], st[2], st[3])
            g.valu("v_add_f32", st[6], st[6], st[7])
            g.valu("v_add_f32", st[0], st[0], st[2])
            g.valu("v_add_f32", st[4], st[4], st[6])
        ops.append((red, 28))

        def fin():
            g.valu("v_mul_f32", m_, sINV, st[0])
            g.valu("v_mul_f32", v_, sINV, st[4])
            g.valu("v_fma_f32", v_, "-" + str(m_), m_, v_)
            g.valu("v_max_f32", v_, 0, v_)
            g.valu("v_add_f32", v_, sEPS, v_)
            g.valu("v_rsq_f32", v_, v_)
            g.valu("v_mul_f32", a_, sL2E, v_)
            g.valu("v_mul_f32", b_, m_, a_)
        ops.append((fin, 40))
        for h in range(2):
            for i in range(8):
                ops.append((lambda i=i, h=h: g.valu("v_fma_f32", y[i], acc[8 * h + i], a_, "-" + str(b_)), 5))
            for i in range(8):
                ops.append((lambda i=i: g.valu("v_exp_f32", e[i], "-" + str(y[i])), 8))
            for i in range(8):
                ops.append((lambda i=i: g.valu("v_fma_f32", e[i], e[i], sL2E, sL2E), 5))
            for i in range(8):
                ops.append((lambda i=i: g.valu("v_rcp_f32", e[i], e[i]), 8))
            for i in range(8):
                ops.append((lambda i=i: g.valu("v_mul_f32", y[i], y[i], e[i]), 4))
            for i in range(4):
                ops.append((lambda i=i: g.valu("v_cvt_pk_bf16_f32", pk[i], y[2 * i], y[2 * i + 1]), 5))
            ops.append((lambda h=h: pending.append(g.ds_write(hw, pk, hoff + 32 * h)), 12))
        return ops

    def pk(op, d, *srcs, mods=""):
        w = d.regs()
        r = set()
        for x in srcs:
            r |= x.regs()
        g._emit(f"{op} {d}, " + ", ".join(str(x) for x in srcs) + mods, "valu", w, r, cost=5)

    def stats_pk_ops(acc, buf):
        S1, S2 = V(24, 2), V(26, 2)
        ops = [(lambda: pk("v_pk_add_f32", S1, acc[0:2], acc[2:4]), 5),
               (lambda: pk("v_pk_mul_f32", S2, acc[0:2], acc[0:2]), 5),
               (lambda: pk("v_pk_fma_f32", S2, acc[2:4], acc[2:4], S2), 5)]
        for i in range(2, 8):
            ops.append((lambda i=i: pk("v_pk_add_f32", S1, S1, acc[2 * i:2 * i + 2]), 5))
            ops.append((lambda i=i: pk("v_pk_fma_f32", S2, acc[2 * i:2 * i + 2], acc[2 * i:2 * i + 2], S2), 5))

        def fin():
            g.valu("v_add_f32", S1[0], S1[0], S1[1])
            g.valu("v_add_f32", S2[0], S2[0], S2[1])
            g.permlane32_swap(S1[0], S2[0])
            g.valu("v_add_f32", S1[0], S1[0], S2[0])
            pending.append(g.ds_write(vSW, S1[0], buf * 1024))
        return ops, [(fin, 28)]

    def norm_pk_clusters(acc, buf, hw, hoff):
        st = vPK
        y = vLN[0:16]
        e = vLN[16:32]
        po = vPO
        A2, B2 = V(28, 2), V(30, 2)
        a_, nb_, m_, v_ = V(28), V(30), V(29), V(31)
        BC = " op_sel_hi:[1,0,0]"
        tk = {}

        def rd():
            tk[0] = g.ds_read(st[0:4], vSR, buf * 1024)
            tk[1] = g.ds_read(st[4:8], vSR, buf * 1024 + 512)

        def red():
            g.need(tk[0], tk[1])
            g.valu("v_add_f32", st[0], st[0], st[1])
            g.valu("v_add_f32", st[4], st[4], st[5])
            g.valu("v_add_f32", st[2], st[2], st[3])
            g.valu("v_add_f32", st[6], st[6], st[7])
            g.valu("v_add_f32", st[0], st[0], st[2])
            g.valu("v_add_f32", st[4], st[4], st[6])

        def fin1():
            g.valu("v_mul_f32", m_, sINV, st[0])
            g.valu("v_mul_f32", v_, sINV, st[4])
            g.valu("v_fma_f32", v_, "-" + str(m_), m_, v_)
            g.valu("v_max_f32", v_, 0, v_)

        def fin2():
            g.valu("v_add_f32", v_, sEPS, v_)
            g.valu("v_rsq_f32", v_, v_)
            g.valu("v_mul_f32", a_, sL2E, v_)
            g.valu("v_mul_f32", nb_, "-" + str(m_), a_)
        head = [(red, 28), (fin1, 18), (fin2, 24)]
        P1 = [(lambda i=i: pk("v_pk_fma_f32", y[2 * i:2 * i + 2], acc[2 * i:2 * i + 2], A2, B2, mods=BC), 5) for i in range(8)]
        T1 = [(lambda i=i: g.valu("v_exp_f32", e[i], "-" + str(y[i])), 8) for i in range(16)]
        P2 = [(lambda i=i: pk("v_pk_fma_f32", e[2 * i:2 * i + 2], e[2 * i:2 * i + 2], S(62, 2), S(62, 2), mods=BC), 5) for i in range(8)]
        T2 = [(lambda i=i: g.valu("v_rcp_f32", e[i], e[i]), 8) for i in range(16)]
        P3 = [(lambda i=i: pk("v_pk_mul_f32", y[2 * i:2 * i + 2], y[2 * i:2 * i + 2], e[2 * i:2 * i + 2]), 5) for i in range(8)]
        C = []
        for h in range(2):
            for i in range(4):
                C.append((lambda i=i, h=h: g.valu("v_cvt_pk_bf16_f32", po[4 * h + i], y[8 * h + 2 * i], y[8 * h + 2 * i + 1]), 5))
            C.append((lambda h=h: pending.append(g.ds_write(hw, po[4 * h:4 * h + 4], hoff + 32 * h)), 12))
        return rd, head, P1, T1, P2, T2, P3, C

    class Feeder:
        def __init__(self, items):
            self.items = items
            self.i = 0
            self.k = 0
            self.count = 0

        def left(self):
            return self.i < len(self.items)

        def one(self):
            it = self.items[self.i]
            if self.k == 0:
                assert Q[qpos["cur"]] is it
                prefetch()
                assert it.btok is not None
                pre_ = it.pre() if it.pre else []
                assert all(x is not None for x in pre_), "W not pumped"
                g.need(it.btok, *pre_)
            D, Aop, C = it.mf[self.k]
            g.mfma(D, Aop, it.buf, C)
            self.count += 1
            self.k += 1
            if self.k == len(it.mf):
                it.emitted = True
                qpos["cur"] += 1
                self.i += 1
                self.k = 0
                prefetch()

    def host(fd, ops, pitch=22, guard=30):
        rem = sum(o[1] for o in ops)
        since = pitch
        for o in ops:
            if fd.left() and since >= pitch and rem >= guard:
                fd.one()
                since = 0
            o[0]()
            since += o[1]
            rem -= o[1]

    wp = {"tr": 0, "iss": 0}

    def w_issue_ops(n, tmin=None):
        ops = []
        tt = ((tmin,) if tmin is not None else ())
        for _ in range(n):
            k = wp["iss"]
            if k >= NG:
                break
            assert k - NGS < wp["tr"], "ring overflow"

            def head(k=k):
                if k >= NGS:
                    assert wtr[3 * (k - NGS) + 2] is not None
                    g.need(wtr[3 * (k - NGS) + 2])
                g.salu("s_add_u32", "m0", sRING, (k % NGS) * 3072)
                g.salu("s_mov_b32", sWO, wunit_src(3 * k)[1])
            ops.append((head, 14) + tt)
            for i in range(3):
                f = 3 * k + i
                if f >= NW:
                    break

                def dm(f=f, i=i, k=k):
                    srd, _ = wunit_src(f)
                    assert mstate["m0"] == ("w", k), "m0 clobbered inside a W group"
                    vo = vWD[i] if f < 72 else vWZ2[i]
                    wdma[f] = g.dma(vo, srd, sWO, off=1024 * i, flags=FW)
                    if f == min(3 * k + 2, NW - 1) and k == cfg.get("gX", 22) - 1:
                        assert state["epoch"] >= XF_EPOCH, "xf issued too early (slots still in use)"
                        for j in range(4):
                            xf_ops(j)[0][0]()
                ops.append((dm, 20) + tt)
            ops[-(min(3, NW - 3 * k)) - 1] = ((lambda head=head, k=k: (head(), mstate.__setitem__("m0", ("w", k)))), 14) + tt
            wp["iss"] += 1
        return ops

    def w_tr_ops(n, tmin=None):
        ops = []
        tt = ((tmin,) if tmin is not None else ())
        for _ in range(n):
            k = wp["tr"]
            if k >= wp["iss"]:
                break
            fs = [f for f in range(3 * k, 3 * k + 3) if f < NW]
            for i, f in enumerate(fs):
                def tr(f=f, i=i, k=k, last=fs[-1]):
                    if i == 0:
                        g.need(wdma[last])
                    d = wunit_dst(f)
                    o = (k % NGS) * 3072 + 1024 * i
                    g.ds_tr(d[0:2], vTR, o)
                    wtr[f] = g.ds_tr(d[2:4], vTR, o + 256)
                ops.append((tr, 16) + tt)
            wp["tr"] += 1
        return ops

    def pump_ops(n, lag=1, tmin=None):
        ops = []
        for _ in range(n):
            if wp["tr"] >= NG:
                break
            ops += w_tr_ops(1, tmin)
            while wp["iss"] < NG and wp["iss"] - NGS <= wp["tr"] - 1 - lag:
                ops += w_issue_ops(1, tmin)
        return ops

    def conv_item(p, dj, s, epoch):
        mf, fs = [], []
        for di in range(3):
            j = p - di
            if 0 <= j <= 3:
                f = widx[(di, dj, s)]
                fs.append(f)
                mf.append((vAcc[j], wreg(f), vAcc[j]))
        return Item(mf, bsrc=(vB, p * RP + dj * PP + 32 * s), epoch=epoch, pre=(lambda fs=fs: [wtr[f] for f in fs]))

    xftok = {}

    def xf_ops(j):
        def f():
            g.salu("s_add_u32", "m0", sCDMA, xfbuf(j))
            mstate["m0"] = None
            xftok[j] = [g.dma(vC0, sXF, sT[j], flags=FX), g.dma(vC1, sXF, sT[j], off=1024, flags=FX)]
        return [(f, 24)]

    def z2_pre_ops(j, vPK=vPK):
        ops = []
        for h in range(2):
            for i in range(4):
                ops.append((lambda i=i, h=h: g.valu("v_cvt_pk_bf16_f32", vPK[4 * h + i], vAcc[j][8 * h + 2 * i],
                                                    vAcc[j][8 * h + 2 * i + 1]), 5))
            ops.append((lambda h=h: pending.append(g.ds_write(vXa[h], vPK[4 * h:4 * h + 4], ebuf(j))), 12))
        return ops

    def z2_items(j, epoch, vAcc2=vAcc2):
        its = []
        for s in range(8):
            C = 0 if s == 0 else vAcc2
            its.append(Item([(vAcc2, vWZ[s], C)], bsrc=(vCs[s], ebuf(j)), epoch=epoch, pre=(lambda s=s: [wtr[72 + s]])))
        for s in range(2):
            its.append(Item([(vAcc2, vID[s], vAcc2)], bsrc=(vXa[s], xfbuf(j)), epoch=epoch))
        return its

    def z2_post_ops(j, vAcc2=vAcc2, vPO=vPO):
        ops = []
        for h in range(2):
            for i in range(4):
                ops.append((lambda i=i, h=h: g.valu("v_cvt_pk_bf16_f32", vPO[4 * h + i], vAcc2[8 * h + 2 * i],
                                                    vAcc2[8 * h + 2 * i + 1]), 5))
            ops.append((lambda h=h: pending.append(g.ds_write(vXa[h], vPO[4 * h:4 * h + 4], xfbuf(j))), 12))
        return ops

    def out_ops(j, vOS=vOS):
        tk = {}
        ops = []

        def rd():
            tk[0] = g.ds_read(vOS[0:4], vLIN, xfbuf(j))
            tk[1] = g.ds_read(vOS[4:8], vLIN, xfbuf(j) + 1024)
        ops.append((rd, 24))

        def st0():
            g.need(tk[0])
            g.bstore(vOS[0:4], vC0, sOUT, sT[j], flags=FS)

        def st1():
            g.need(tk[1])
            g.bstore(vOS[4:8], vC1, sOUT, sT[j], off=1024, flags=FS)
        ops.append((lambda: None, 24))
        ops.append((st0, 12))
        ops.append((st1, 12))
        return ops

    accs = {0: vAcc[0], 1: vAcc[1], 2: vAcc[2], 3: vAcc[3], 4: vAcc2, 5: vAcc3}
    hws = {0: (vHW, 0), 1: (vHW, RP), 2: (vHW, 2 * RP), 3: (vHW, 3 * RP), 4: (vHWA, 0), 5: (vHWB, 0)}
    ES = cfg.get("early_s", NS // 3)
    dj0 = DJ[0]
    done_groups = set()

    def groups(ps, djs, ss, epoch):
        out = []
        for p in ps:
            for dj in djs:
                for s in ss:
                    if (p, dj, s) in done_groups:
                        continue
                    done_groups.add((p, dj, s))
                    out.append(conv_item(p, dj, s, epoch))
        return out

    ORDER = cfg.get("order", [0, 1, 4, 2, 3, 5])
    stepof = {t: k for k, t in enumerate(ORDER)}
    WBATCH = cfg.get("wbatch", NGS)
    EARLY = cfg.get("early", [0, 0, 0, 16, 32, 48])
    seq = [(dj, s) for dj in DJ for s in range(8)]

    def tiles_for(p, dj):
        need = set()
        for r in (p, p + 4):
            if r == 0:
                need |= {4, 5} if dj > 0 else {4}
            elif r == 9:
                need.add(5)
            else:
                need.add((r - 1) % 4)
                if dj != 1:
                    need.add(4)
        return need

    def first_step(p, dj):
        k = max(stepof[t] + 2 for t in tiles_for(p, dj))
        for di in range(3):
            j = p - di
            if 0 <= j <= 3:
                k = max(k, stepof[j] + 2)
        return k

    def vis_epoch(p, dj):
        return max(stepof[t] + 3 for t in tiles_for(p, dj))

    def issue_tile(t):
        if t < 4:
            issue_T(t)
        else:
            issue_R(t)
    GPS = cfg.get("gps", [0, 3, 3, 3, 4, 5])
    ROLL = cfg.get("roll", 4)
    NLEAD = cfg.get("nlead", 3)
    plan = []
    have_prev = 0
    for k in range(6):
        t = ORDER[k]
        have0 = wp["tr"]
        acts = []
        if k >= 1 and k + NSLOT - 1 <= 5:
            acts = [(lambda k=k, i=i: act_piece(ORDER[k + NSLOT - 1], i), 24) for i in range(4)]
        if k == 0:
            for ev in cfg.get("issue_c", ["T3", "WARM"]):
                if ev == "WARM":
                    acts = acts + [(issue_warm, 80)]
                else:
                    acts = acts + [(lambda ev=ev, i=i: act_piece(int(ev[1]), i), 24) for i in range(4)]
        wb = []
        tr0 = []
        if k <= ROLL:
            tr0 = w_tr_ops(min(wp["iss"], 21) - wp["tr"])
        have = wp["tr"]
        if k < ROLL:
            for _ in range(GPS[k]):
                if wp["iss"] - wp["tr"] < NGS:
                    wb.append(w_issue_ops(1))
        else:
            if k == ROLL:
                wb.append(w_issue_ops(NGS - 1))
            for _ in range(GPS[k]):
                b = []
                if wp["tr"] < min(21, wp["iss"]) and wp["iss"] - wp["tr"] >= NGS - 1:
                    b += w_tr_ops(1)
                if wp["iss"] - wp["tr"] < NGS:
                    b += w_issue_ops(1)
                wb.append(b)
        z = z1_items(t, accs[t], k + 1)
        lead, rest = [], []
        budget = EARLY[k]
        for p in (1, 2, 3, 4):
            for gi, (dj, s_) in enumerate(seq[:have]):
                if first_step(p, dj) <= k and (p, dj, s_) not in done_groups and budget > 0:
                    it = groups([p], [dj], [s_], vis_epoch(p, dj))
                    budget -= len(it[0].mf)
                    if len(lead) < NLEAD and vis_epoch(p, dj) <= k and gi < have0:
                        lead += it
                    else:
                        rest += it
        Q.extend(lead + z + rest)
        plan.append((t, acts, wb, tr0, lead, z, rest))

    for k in range(6):
        t, acts, wb, tr0, lead, z, rest = plan[k]
        if k == 0:
            sync(*z1dma, *atok[t])
            for s in range(8):
                g.ds_tr(vWZ[s][0:2], vTZ, s * 4096)
                z1tr[s] = g.ds_tr(vWZ[s][2:4], vTZ, s * 4096 + 1024)
            pending.append(z1tr[7])
        else:
            sync(*atok[t])
        stamp(f"step{k}")
        if cfg.get("pk") and k >= 1:
            tp = ORDER[k - 1]
            rd, nhead, P1, T1, P2, T2, P3, Cc = norm_pk_clusters(accs[tp], (k - 1) & 1, *hws[tp])
            SP, Sfin = stats_pk_ops(accs[t], k & 1)
            rd()
            prefetch()
            for o in tr0:
                o[0]()
            if k < ROLL:
                vmo = [o for b in wb for o in b] + acts
            else:
                vmo = list(acts) + [o for b in wb for o in b]
            fd = Feeder(lead + z + rest)
            nz = sum(len(i.mf) for i in lead) + 10
            nv = len(vmo)
            c1 = cfg.get("pkv1", 0.5)
            v1 = vmo[:int(nv * c1)]
            v2 = vmo[int(nv * c1):]
            host(fd, v1[:3] + nhead + v1[3:])
            for o in P1: o[0]()
            host(fd, T1)
            while fd.count < nz:
                fd.one()
            host(fd, v2[:len(v2) // 2] or [(lambda: None, 30)], guard=10 ** 9 if False else 30)
            for o in P2: o[0]()
            for o in SP: o[0]()
            host(fd, Sfin + T2)
            for o in P3: o[0]()
            tail_ops = Cc + v2[len(v2) // 2:]
            host(fd, tail_ops, guard=0)
            while fd.left():
                fd.one()
            continue
        tp = ORDER[k - 1] if k else None
        nrm = norm_ops(accs[tp], (k - 1) & 1, *hws[tp]) if k else []
        st = stats_ops(accs[t], k & 1)
        if nrm:
            nrm[0][0]()
            nrm = nrm[1:]
        prefetch()
        for o in tr0:
            o[0]()
        pre_roll = k < ROLL
        if pre_roll:
            head = [o for b in wb for o in b] + acts
            wbs = []
        else:
            head = list(acts)
            wbs = list(wb)
        tail = []
        if wbs:
            tail = wbs.pop()
        elif len(head) > 6:
            pass
        ncov = cfg.get("ncov", 3)
        if not lead and not tr0:
            for o in head[:ncov]:
                o[0]()
            head = head[ncov:]
        body = []
        tot = sum(f[1] for f in nrm) or 1
        marks = [((i + 0.3) / max(1, len(wbs)), b) for i, b in enumerate(wbs)]
        acc_c = 0
        mi = 0
        hi = 0
        for idx, op in enumerate(nrm):
            if hi < len(head) and idx % 2 == 1:
                body.append(head[hi]); hi += 1
            while mi < len(marks) and marks[mi][0] * tot <= acc_c:
                body += marks[mi][1]; mi += 1
            body.append(op)
            acc_c += op[1]
        body += head[hi:]
        for m in marks[mi:]:
            body += m[1]
        items = lead + z + rest
        nm = sum(len(i.mf) for i in items)
        nz = sum(len(i.mf) for i in lead) + 10
        total = sum(f[1] for f in body + st + tail)
        per = max(24, total / nm) if rest else 24
        cum = 0
        pos = len(body)
        for i, f in enumerate(body):
            if cum >= per * nz + 60:
                pos = i
                break
            cum += f[1]
        st = [(f[0], f[1], 32 * nz) for f in st]
        fill = body[:pos] + st + body[pos:] + tail
        if cfg.get("fine2") == k:
            nf = []
            for i, f in enumerate(fill):
                if i % 10 == 0:
                    nf.append((lambda i=i: stamp(f"f{i}"), 0) + tuple(f[2:]))
                nf.append(f)
            fill = nf
        run(items, fill, min_budget=per, spread=False)

    sync()
    stamp("step6")
    ep6 = state["epoch"]
    PK6 = cfg.get("pk") and cfg.get("pk6", 1)
    if PK6:
        rd, nhead, P1, T1, P2, T2, P3, Cc = norm_pk_clusters(accs[5], 5 & 1, *hws[5])
        tr6 = w_tr_ops(min(wp["iss"], 21) - wp["tr"])
        have6 = wp["tr"]
        vmo = w_issue_ops(NGS - (wp["iss"] - wp["tr"]))
        vmo += pump_ops(cfg.get("pump6", 2))
        assert wp["tr"] <= 21
        rest = []
        budget = cfg.get("early6", 24)
        for p in (1, 2, 3, 4):
            for (dj, s_) in seq[:have6]:
                if (p, dj, s_) not in done_groups and budget > 0:
                    rest += groups([p], [dj], [s_], ep6)
                    budget -= len(rest[-1].mf)
        Q.extend(rest)
        rd()
        for o in tr6:
            o[0]()
        prefetch()
        fd = Feeder(rest)
        h2 = len(vmo) // 2
        host(fd, vmo[:3] + nhead + vmo[3:h2])
        for o in P1: o[0]()
        host(fd, T1)
        for o in P2: o[0]()
        host(fd, T2)
        for o in P3: o[0]()
        host(fd, Cc + vmo[h2:], guard=0)
        while fd.left():
            fd.one()
        sync()
        stamp("step7")
        ep6 = state["epoch"]
    dW = cfg.get("dW", 240)
    tRB = 0 if PK6 else cfg.get("tRB", 900)
    have = wp["tr"]
    gX = cfg.get("gX", 22)
    dX = cfg.get("dX", 2200)

    def t_arr(k):
        if k < have:
            return 0
        tt = (k - have + 1) * dW
        if k >= gX:
            tt += dX
        return tt
    avail = {}
    for k, key in enumerate(seq):
        avail[key] = 0 if k < have else max(t_arr(k) + 120, tRB + 180 if k >= 21 else 0)
    prio = cfg.get("prio", [1, 2, 0, 5, 3, 4])
    todo = [(p, dj, s) for p in prio for (dj, s) in seq if (p, dj, s) not in done_groups]
    needM = {j: {(p, dj, s) for p in (j, j + 1, j + 2) for (dj, s) in seq} - done_groups for j in range(4)}
    tW2 = max(t_arr(26) + 120, t_arr(gX - NGS) + dX + 200, tRB + 180)
    events = []
    t = 0
    rb_done = bool(PK6)
    z2_ready = {}
    z2_started = set()
    zorder = []
    z2_last = -10**9
    z2_wait = {}
    NZ = 2 if cfg.get("joint", 1) else 4
    while todo or len(z2_started) < NZ:
        if not rb_done and t >= tRB:
            events.append(("rb", t))
            rb_done = True
        cand = None
        for j in range(NZ):
            if j in z2_ready and j not in z2_started and t >= z2_ready[j] and t >= tW2 and t >= z2_last + 320 + 128:
                cand = ("z2", j)
                break
        if cand is None:
            for key in todo:
                p, dj, s = key
                if avail[(dj, s)] <= t and (rb_done or p not in (0, 5)):
                    cand = ("g", key)
                    break
        if cand is None:
            t += 32
            if not todo and not rb_done:
                events.append(("rb", t)); rb_done = True
            continue
        events.append(cand + (t,))
        if cand[0] == "z2":
            z2_started.add(cand[1])
            z2_last = t
            t += 320
            for j in list(z2_wait):
                if z2_wait[j] and (j - 1) in z2_started:
                    z2_wait[j] = False
                    z2_ready[j] = t + cfg.get("z2lag", 192)
                    events.append(("z2pre", j, t))
        else:
            key = cand[1]
            todo.remove(key)
            p = key[0]
            t += 32 * len([di for di in range(3) if 0 <= p - di <= 3])
            for j in range(4):
                needM[j].discard(key)
                if not needM[j] and j not in z2_ready and j not in z2_wait and j < NZ:
                    z2_wait[j] = True
            for j in list(z2_wait):
                if z2_wait[j] and (NSLOT == 4 or j < 2 or (j - 1) in z2_started):
                    z2_wait[j] = False
                    z2_ready[j] = t + cfg.get("z2lag", 192)
                    events.append(("z2pre", j, t))
    sys.stderr.write(f"modelled main phase {t} cycles; z2 starts {[e[2] for e in events if e[0]=='z2']}\n")

    items = []
    fillers = []
    epochs = {}
    if not PK6:
        fillers += [(f[0], f[1], 0) for f in norm_ops(accs[5], 5 & 1, *hws[5])]
    pump_timed = w_issue_ops(NGS - (wp["iss"] - wp["tr"]), tmin=0)
    for k in range(have, NG):
        tm_ = t_arr(k) - 60
        if k >= 21:
            tm_ = max(tm_, tRB)
        pump_timed += pump_ops(1, tmin=tm_)
    xf_timed = []
    timed = []
    for f in pump_timed + xf_timed:
        timed.append(f)
    last_post = None
    for ev in events:
        if ev[0] == "g":
            p, dj, s = ev[1]
            ep = ep6 if (PK6 or p not in (0, 5)) else (lambda: epochs.get("rb"))
            items.append(conv_item(p, dj, s, ep))
        elif ev[0] == "rb":
            def f_rb():
                sync()
                epochs["rb"] = state["epoch"]
                stamp("step7")
            items.append(Item([], fn=f_rb))
            items[-1].kind = ("rb", ev[1])
        elif ev[0] == "z2pre":
            j = ev[1]
            timed += [(f[0], f[1], ev[2]) for f in z2_pre_ops(j)]
        elif ev[0] == "z2":
            j = ev[1]

            def f_z(j=j):
                sync(*xftok[j])
                epochs[("z", j)] = state["epoch"]
                stamp(f"z2_{j}")
            it = Item([], fn=f_z)
            it.kind = ("z2sync", ev[2], j)
            items.append(it)
            items += z2_items(j, (lambda j=j: epochs.get(("z", j))))
            timed += [(f[0], f[1], ev[2] + 320 + 64) for f in z2_post_ops(j)]
            if j > 0:
                timed += [(f[0], f[1], ev[2] + 32) for f in out_ops(zorder[-1])]
            zorder.append(j)
    timed.sort(key=lambda f: f[2])
    allf = fillers + timed
    Q.extend(items)

    fi = 0
    tm = 0
    credit = 0
    per = cfg.get("per", 16)
    for it in items:
        assert Q[qpos["cur"]] is it
        if it.fn is not None:
            tl = it.kind[1]
            while fi < len(allf) and allf[fi][2] <= tl:
                allf[fi][0]()
                fi += 1
            it.fn()
            it.emitted = True
            qpos["cur"] += 1
            continue
        prefetch()
        if it.btok is None:
            raise RuntimeError("B read not issued (epoch?)")
        pre = it.pre() if it.pre else []
        while any(x is None for x in pre):
            allf[fi][0]()
            fi += 1
            pre = it.pre()
        g.need(it.btok, *pre)
        for k, (D, Aop, C) in enumerate(it.mf):
            g.mfma(D, Aop, it.buf, C)
            tm += 32
            c0 = g.cost
            if k == len(it.mf) - 1:
                it.emitted = True
                prefetch()
            credit = min(credit, 0) + cfg.get("gap", 20) - (g.cost - c0)
            while fi < len(allf) and credit > 0 and allf[fi][2] <= tm:
                allf[fi][0]()
                credit -= allf[fi][1]
                fi += 1
        qpos["cur"] += 1
    while fi < len(allf):
        allf[fi][0]()
        fi += 1
    if NZ == 2:
        vS3 = [V(224 + i) for i in range(10)]
        p2 = z2_pre_ops(2, vPK)
        for f in p2:
            f[0]()
        for i in range(8):
            g.valu("v_add_u32", vS3[i], WB, vCs[i])
        for h in range(2):
            g.valu("v_add_u32", vS3[8 + h], WB, vXa[h])
            for i in range(4):
                g.valu("v_cvt_pk_bf16_f32", vOS[4 * h + i], vAcc[3][8 * h + 2 * i], vAcc[3][8 * h + 2 * i + 1])
            pending.append(g.ds_write(vS3[8 + h], vOS[4 * h:4 * h + 4], 0))
        sync(*xftok[2], *xftok[3])
        stamp("z2_2")
        e_ = state["epoch"]
        za, zb = z2_items(2, e_, vAcc2), z2_items(3, e_, vAcc3)
        for i in range(8):
            zb[i].bsrc = (vS3[i], 0)
        zz = za[:5] + [x for pr in zip(za[5:], zb[:5]) for x in pr] + zb[5:]
        Q.extend(zz)
        run(zz, out_ops(1, vPK) + [(f[0], f[1], 32 * 17) for f in z2_post_ops(2, vAcc2, vPO)], min_budget=24, spread=False)
        for f in z2_post_ops(3, vAcc3, vOS):
            f[0]()
        sync()
        stamp("z2_3")
        o2, o3 = out_ops(2, vAcc2[0:8]), out_ops(3, vAcc2[8:16])
        o2[0][0](); o3[0][0]()
        for f in o2[2:] + o3[2:]:
            f[0]()
    else:
        sync()
        for f in out_ops(zorder[-1]):
            f[0]()
    stamp("end")
    if STAMPS:
        g.raw("  s_waitcnt vmcnt(0)")
        g.raw("  s_memtime s[74:75]")
        g.raw("  s_memrealtime s[98:99]")
        g.raw("  s_waitcnt lgkmcnt(0)")
        n = len(stamps)
        g.raw(f"  s_mov_b32 s{76 + n}, s74")
        n += 1
        stamps.append("drained")
        g.raw("  s_lshl_b32 s3, s2, 2")
        g.raw("  s_add_u32 s3, s3, s52")
        g.raw("  s_lshl_b32 s3, s3, 7")
        g.raw("  v_mov_b32 v0, 0")
        for i in range(n):
            g.raw(f"  v_mov_b32 v1, s{76 + i}")
            g.raw(f"  buffer_store_dword v1, v0, s[48:51], s3 offen offset:{4 * i}")
        g.raw("  v_mov_b32 v1, s96")
        g.raw(f"  buffer_store_dword v1, v0, s[48:51], s3 offen offset:{4 * 30}")
        g.raw("  v_mov_b32 v1, s98")
        g.raw(f"  buffer_store_dword v1, v0, s[48:51], s3 offen offset:{4 * 31}")
    g.raw("L_end:")
    g.raw("  s_endpgm")
    tail = """.section .rodata,"a"
.p2align 6
.amdhsa_kernel standalone__controlnet__diffusion_kernel
  .amdhsa_next_free_vgpr 512
  .amdhsa_next_free_sgpr 102
  .amdhsa_accum_offset 256
  .amdhsa_group_segment_fixed_size 0
  .amdhsa_kernarg_size 72
  .amdhsa_user_sgpr_count 2
  .amdhsa_user_sgpr_kernarg_segment_ptr 1
  .amdhsa_system_sgpr_workgroup_id_x 1
.end_amdhsa_kernel
"""
    sys.stderr.write(f"est issue cycles {g.cost}, nops {g.nops}, lines {len(g.lines)}, NS {NS}\n")
    if STAMPS:
        open(cfg.get("_out", "x") + ".names", "w").write(",".join(stamps))
    return "\n".join(hdr) + "\n" + g.text() + tail


if __name__ == "__main__":
    import json
    out = sys.argv[1]
    cfg = json.loads(sys.argv[2]) if len(sys.argv) > 2 else {}
    cfg["_out"] = out
    open(out, "w").write(build(cfg))
```

```python
import sys
from dsl import *

RP = 4928
PP = 272
import os
NSLOT = int(os.environ.get('NSLOT', 4))
AB = 0
HB = AB + NSLOT * 16384
SB = HB + 10 * RP
WB = SB + 2048
NS = (163840 - WB) // 12288 * 3
LDS_BYTES = WB + NS * 4096
assert LDS_BYTES <= 163840
SLOT = {}
def cslot(t): return AB + SLOT[t] * 16384
def xslot(t): return AB + SLOT[t] * 16384 + 8192
if NSLOT == 3:
    def xfbuf(j): return AB + j * 8192
    def ebuf(j): return AB + 2 * 16384 + (j & 1) * 8192
    XF_EPOCH = 6
    DUMMY = AB + 2 * 16384
else:
    def xfbuf(j): return AB + 2 * 16384 + j * 8192
    def ebuf(j): return AB + j * 8192
    XF_EPOCH = 5
    DUMMY = AB

sXF, sX, sC, sOUT, sWZ1, sWZ2, sWC, sWS = (S(20, 4), S(24, 4), S(28, 4), S(32, 4), S(36, 4), S(40, 4), S(44, 4), S(48, 4))
sW = S(52); sTB = S(53); sRING = S(54); sZ1ST = S(55); sCDMA = S(56); s64w = S(57)
sYM = S(58); sXM = S(59); sY0 = S(60); sX0 = S(61); sL2E = S(62); sINV = S(63); sEPS = S(64); sTBM = S(65)
sT = [S(66), S(67), S(68), S(69)]
sTMP = S(70); sTMP2 = S(71); sTMP3 = S(72); sWO = S(73)

vLIN = V(1); vC0 = V(2); vC1 = V(3); vWS = V(4); vTR = V(5); vTZ = V(6); vB = V(7)
vCs = [V(8 + s) for s in range(8)]
vHW = V(16); vHWA = V(17); vHWB = V(18); vSW = V(19); vSR = V(20); vXa = [V(21), V(22)]
vT = [V(23 + i) for i in range(9)]
NB = 6
vBuf = [V(32 + 4 * i, 4) for i in range(NB)]
vID = [V(56, 4), V(60, 4)]
vRG = {4: [V(64), V(65)], 5: [V(66), V(67)]}
vWD = [V(4), V(92), V(93)]
vWZ2 = [V(4), V(94), V(95)]
vPK = V(68, 8)
vPO = V(76, 8)
vOS = V(84, 8)
vAcc3 = V(96, 16)
vAcc2 = V(112, 16)
vAcc = [V(128 + 16 * j, 16) for j in range(4)]
vWZ = [V(192 + 4 * f, 4) for f in range(8)]
vLN = V(224, 32)


def wreg(f):
    return A(4 * f, 4) if f < 64 else V(224 + 4 * (f - 64), 4)


class Item:
    def __init__(self, mf, bsrc=None, epoch=0, pre=None, fn=None):
        self.mf = mf
        self.bsrc = bsrc
        self.epoch = epoch
        self.pre = pre
        self.fn = fn
        self.btok = None
        self.buf = None
        self.emitted = False


def build(cfg):
    g = G()
    hdr = [f"; @launch grid=(256,1,1) block=(256,1,1) lds={LDS_BYTES}",
           '.amdgcn_target "amdgcn-amd-amdhsa--gfx950"', ".text",
           ".globl standalone__controlnet__diffusion_kernel", ".p2align 8",
           ".type standalone__controlnet__diffusion_kernel,@function",
           "standalone__controlnet__diffusion_kernel:"]
    stamps = []
    STAMPS = cfg.get("stamps")

    def stamp(name):
        if not STAMPS:
            return
        if isinstance(STAMPS, list) and name not in STAMPS:
            return
        n = len(stamps)
        assert n < 19
        stamps.append(name)
        sys.stderr.write(f"  stamp {name}: est {g.cost} instrs {len(g.lines)} nops {g.nops}\n")
        g.raw("  s_memtime s[74:75]")
        g.raw("  s_waitcnt lgkmcnt(0)")
        g.done["lg"] = g.issued["lg"]
        g.raw(f"  s_mov_b32 s{76 + n}, s74")
        g.pos += 3

    DJ = cfg.get("dj_order", (1, 0, 2))
    for k_, t_ in enumerate(cfg.get("order", [0, 1, 4, 2, 3, 5])):
        SLOT[t_] = k_ % NSLOT
    FA = cfg.get("fa", " nt"); FX = cfg.get("fx", " nt"); FS = cfg.get("fs", " nt"); FWARM = cfg.get("fwarm", ""); FW = cfg.get("fw", ""); FZ = cfg.get("fz", "")

    g.sop("s_cmp_ge_u32 s2, 256", r={"s2"})
    g.sop("s_cbranch_scc1 L_end")
    g.raw("  s_load_dwordx16 s[4:19], s[0:1], 0")
    if STAMPS:
        g.raw("  s_load_dwordx2 s[48:49], s[0:1], 64")
        g.raw("  s_memrealtime s[96:97]")
    g.pos += 2
    stamp("start")
    L = V(96); I = V(97); HF = V(99); t0 = V(100); t1 = V(101); t2 = V(98); t3 = V(102); vZS = V(103)
    vL16 = V(104)
    g.valu("v_and_b32", L, 63, V(0))
    g.valu("v_lshrrev_b32", t0, 6, V(0))
    g.readfirstlane(sW, t0)
    g.valu("v_and_b32", I, 31, V(0))
    g.valu("v_bfe_u32", HF, V(0), 5, 1)
    if cfg.get("codepf"):
        nl = cfg["codepf"]
        g.raw("  s_getpc_b64 s[90:91]")
        g.raw("L_pc:")
        g.pos += 1
        g.salu("s_lshr_b32", sTMP, "s2", 3)
        g.salu("s_lshl_b32", sTMP, sTMP, 2)
        g.salu("s_add_u32", sTMP, sTMP, sW)
        g.salu("s_mul_i32", sTMP, sTMP, nl * 128)
        g.valu("v_and_b32", t0, nl - 1, V(0))
        g.valu("v_lshlrev_b32", t0, 7, t0)
        g.valu("v_add_u32", t0, sTMP, t0)
        g.valu("v_min_u32", t0, "L_end-L_pc", t0)
        g.valu("v_mov_b32", t1, S(91))
        g._emit(f"v_add_co_u32 {t0}, vcc, s90, {t0}", "valu", t0.regs() | {"vcc"}, t0.regs())
        g._emit(f"v_addc_co_u32 {t1}, vcc, 0, {t1}, vcc", "valu", t1.regs() | {"vcc"}, t1.regs() | {"vcc"})
        g.raw("  global_load_dword a235, v[100:101], off")
        g.pos += 1
        g._tok("vm")
    g.salu("s_and_b32", sTMP, "s2", 7)
    g.salu("s_lshl_b32", sTMP, sTMP, 5)
    g.salu("s_lshr_b32", sTMP2, "s2", 3)
    g.salu("s_add_u32", sTMP, sTMP, sTMP2)
    g.salu("s_lshr_b32", sTMP3, sTMP, 3)
    g.salu("s_lshl_b32", sTB, sTMP3, 18)
    g.salu("s_and_b32", sY0, sTMP3, 15)
    g.salu("s_lshl_b32", sY0, sY0, 3)
    g.salu("s_and_b32", sX0, sTMP, 7)
    g.salu("s_lshl_b32", sTMP3, sX0, 12)
    g.salu("s_lshl_b32", sX0, sX0, 4)
    g.salu("s_add_u32", sTB, sTB, sTMP3)
    g.salu("s_mov_b32", sT[0], sTB)
    for j in range(1, 4):
        g.salu("s_add_u32", sT[j], sTB, j * 32768)
    g.salu("s_lshl_b32", sCDMA, sW, 11)
    g.salu("s_lshl_b32", s64w, sW, 6)
    g.salu("s_lshr_b32", sTMP, sW, 1)
    g.salu("s_lshl_b32", sTMP, sTMP, 17)
    g.salu("s_and_b32", sTMP2, sW, 1)
    g.salu("s_lshl_b32", sTMP2, sTMP2, 3)
    g.valu("v_lshrrev_b32", t3, 4, L)
    g.valu("v_add_u32", t0, sTMP2, t3)
    g.valu("v_and_b32", t1, 15, L)
    g.valu("v_xor_b32", t2, t1, t0)
    g.valu("v_lshlrev_b32", t2, 4, t2)
    g.valu("v_lshl_add_u32", t2, t0, 8, t2)
    g.valu("v_add_u32", vC0, sTMP, t2)
    g.valu("v_add_u32", t0, 4, t0)
    g.valu("v_xor_b32", t2, t1, t0)
    g.valu("v_lshlrev_b32", t2, 4, t2)
    g.valu("v_lshl_add_u32", t2, t0, 8, t2)
    g.valu("v_add_u32", t2, sTMP, t2)
    g.valu("v_subrev_u32", vC1, 1024, t2)
    g.valu("v_bfe_u32", t0, L, 2, 2)
    g.valu("v_xor_b32", t0, t0, t3)
    g.valu("v_lshlrev_b32", t0, 6, t0)
    g.valu("v_lshl_add_u32", t0, t3, 8, t0)
    g.valu("v_and_b32", t1, 3, L)
    g.valu("v_lshl_add_u32", vZS, t1, 4, t0)
    g.valu("v_lshrrev_b32", t0, 2, L)
    g.valu("v_lshlrev_b32", t0, 8, t0)
    g.valu("v_lshl_add_u32", t0, t1, 4, t0)
    g.valu("v_add_u32", vWS, s64w, t0)
    g.valu("v_add_u32", vWD[1], 98304 - 1024, vWS)
    g.valu("v_add_u32", vWD[2], 2 * (98304 - 1024), vWS)
    g.valu("v_add_u32", vWZ2[1], 4096 - 1024, vWS)
    g.valu("v_add_u32", vWZ2[2], 2 * (4096 - 1024), vWS)
    g.valu("v_lshlrev_b32", vL16, 4, L)
    g.salu("s_mul_i32", sTMP3, sW, NS * 1024)
    g.salu("s_add_u32", sRING, sTMP3, WB)
    g.salu("s_lshl_b32", sZ1ST, sW, 13)
    g.raw("  s_waitcnt lgkmcnt(0)")
    g.pos += 1

    def mk_srd(srd, p, n):
        g.salu("s_mov_b32", srd[0], S(p))
        g.salu("s_mov_b32", srd[1], S(p + 1))
        g.salu("s_mov_b32", srd[2], n)
        g.salu("s_mov_b32", srd[3], "0x00020000")
    mk_srd(sC, 8, 8388608)
    mk_srd(sX, 6, 8388608)

    atok = {}
    mstate = {"m0": None}

    def issue_T(j):
        g.salu("s_add_u32", "m0", sCDMA, cslot(j))
        a = g.dma(vC0, sC, sT[j], flags=FA)
        b = g.dma(vC1, sC, sT[j], off=1024, flags=FA)
        g.salu("s_add_u32", "m0", sCDMA, xslot(j))
        c = g.dma(vC0, sX, sT[j], flags=FA)
        d = g.dma(vC1, sX, sT[j], off=1024, flags=FA)
        atok[j] = [a, b, c, d]

    def act_piece(t, i):
        srd, base = ((sC, cslot(t)), (sX, xslot(t)))[i >> 1]
        g.salu("s_add_u32", "m0", sCDMA, base)
        mstate["m0"] = None
        if t < 4:
            tok = g.dma((vC0, vC1)[i & 1], srd, sT[t], off=1024 * (i & 1), flags=FA)
        else:
            tok = g.dma(vRG[t][i & 1], srd, 0, off=1024 * (i & 1), flags=FA)
        atok.setdefault(t, []).append(tok)

    def issue_R(t):
        toks = []
        for srd, base in ((sC, cslot(t)), (sX, xslot(t))):
            g.salu("s_add_u32", "m0", sCDMA, base)
            toks.append(g.dma(vRG[t][0], srd, 0, flags=FA))
            toks.append(g.dma(vRG[t][1], srd, 0, off=1024, flags=FA))
        atok[t] = toks

    worder = []
    for dj in DJ:
        for s in range(8):
            for di in range(3):
                worder.append((di, dj, s))
    widx = {k: f for f, k in enumerate(worder)}
    NW = 80
    wdma = [None] * NW
    wtr = [None] * NW

    def wunit_src(f):
        if f < 72:
            di, dj, s = worder[f]
            return sWC, ((di * 3 + dj) * 128 + 16 * s) * 256
        return sWZ2, (f - 72) * 4096

    def wunit_dst(f):
        return wreg(f) if f < 72 else vWZ[f - 72]

    NG = 27
    NGS = NS // 3

    def issue_WG(k):
        g.salu("s_add_u32", "m0", sRING, (k % NGS) * 3072)
        f0 = 3 * k
        srd, off = wunit_src(f0)
        g.salu("s_mov_b32", sTMP, off)
        for i in range(3):
            f = f0 + i
            if f >= NW:
                break
            vo = vWD[i] if f < 72 else vWZ2[i]
            wdma[f] = g.dma(vo, srd, sTMP, off=1024 * i, flags=FW)

    def tr_WG(k):
        fs = [f for f in range(3 * k, 3 * k + 3) if f < NW]
        g.need(wdma[fs[-1]])
        for i, f in enumerate(fs):
            d = wunit_dst(f)
            o = (k % NGS) * 3072 + 1024 * i
            g.ds_tr(d[0:2], vTR, o)
            wtr[f] = g.ds_tr(d[2:4], vTR, o + 256)

    z1dma = []

    def issue_wz1(hs=(0, 1)):
        for h in hs:
            g.salu("s_add_u32", "m0", sZ1ST, HB + h * 4096)
            g.salu("s_add_u32", sTMP, sZ1ST, h * 4096)
            for m in range(4):
                z1dma.append(g.dma(vZS, sWZ1, sTMP, off=m * 1024, flags=FZ))

    def issue_warm():
        g.salu("s_lshr_b32", sTMP2, "s2", 3)
        g.salu("s_mul_i32", sTMP, sTMP2, 9216)
        g.salu("s_lshl_b32", sTMP3, sW, 10)
        g.salu("s_add_u32", sTMP, sTMP, sTMP3)
        g.bload(A(240, 4), vL16, sWC, sTMP, flags=FWARM)
        g.salu("s_add_u32", sTMP, sTMP, 4096)
        g.bload(A(244, 4), vL16, sWC, sTMP, flags=FWARM)
        g.valu("v_and_b32", t0, 0xf0, vL16)
        g.salu("s_mul_i32", sTMP, sTMP2, 9216)
        g.salu("s_lshl_b32", sTMP3, sW, 8)
        g.salu("s_add_u32", sTMP, sTMP, sTMP3)
        g.salu("s_add_u32", sTMP, sTMP, 8192)
        g.bload(A(248, 4), t0, sWC, sTMP, flags=FWARM)
        g.salu("s_lshl_b32", sTMP, sTMP2, 10)
        g.salu("s_add_u32", sTMP, sTMP, sTMP3)
        g.bload(A(252, 4), t0, sWZ2, sTMP, flags=FWARM)
        if cfg.get("warm_z1", True):
            g.bload(A(236, 4), t0, sWZ1, sTMP, flags=FWARM)

    vBIG = V(105)

    def ring_coords(tile, idx, hr, hc, tmp):
        if tile == 4:
            g.vcmp("v_cmp_gt_u32", 16, idx)
            g.valu("v_lshrrev_b32", hr, 1, idx)
            g.valu("v_add_u32", hr, 1, hr)
            g.valu("v_and_b32", hc, 1, idx)
            g.valu("v_mul_u32_u24", hc, 17, hc)
            g.valu("v_subrev_u32", tmp, 16, idx)
            g.cndmask(hr, 0, hr)
            g.cndmask(hc, tmp, hc)
        else:
            g.vcmp("v_cmp_gt_u32", 18, idx)
            g.valu("v_subrev_u32", tmp, 2, idx)
            g.valu("v_mov_b32", hr, 9)
            g.cndmask(hr, 0, hr)
            g.cndmask(hc, tmp, idx)
            g.vcmp("v_cmp_gt_u32", 20, idx)
            g.valu("v_mov_b32", tmp, 64)
            g.cndmask(hr, tmp, hr)

    hr_, hc_, tmp_, idx_, sw_, d_ = V(106), V(107), V(108), V(109), V(110), V(111)

    def ring_dma_setup(tile, e):
        hr, hc, tmp, idx, sw = hr_, hc_, tmp_, idx_, sw_
        dst = vRG[tile][e]
        g.salu("s_lshl_b32", sTMP2, sW, 3)
        g.salu("s_add_u32", sTMP2, sTMP2, 4 * e)
        g.valu("v_lshrrev_b32", idx, 4, L)
        g.valu("v_add_u32", idx, sTMP2, idx)
        ring_coords(tile, idx, hr, hc, tmp)
        g.valu("v_add_u32", tmp, sYM, hr)
        g.valu("v_add_u32", d_, sXM, hc)
        g.valu("v_max_u32", tmp, tmp, d_)
        if tile == 5:
            g.valu("v_lshlrev_b32", d_, 3, hr)
            g.valu("v_max_u32", tmp, tmp, d_)
        g.vcmp("v_cmp_gt_u32", 128, tmp)
        g.valu("v_lshlrev_b32", dst, 15, hr)
        g.valu("v_lshl_add_u32", dst, hc, 8, dst)
        g.valu("v_add_u32", dst, sTBM, dst)
        g.valu("v_xor_b32", sw, idx, L)
        g.valu("v_and_b32", sw, 15, sw)
        g.valu("v_lshl_add_u32", dst, sw, 4, dst)
        if e == 1:
            g.valu("v_subrev_u32", dst, 1024, dst)
        g.cndmask(dst, vBIG, dst)

    def ring_hw_setup(tile):
        hr, hc, tmp = hr_, hc_, tmp_
        ring_coords(tile, I, hr, hc, tmp)
        hw = vHWA if tile == 4 else vHWB
        if tile == 5:
            g.vcmp("v_cmp_gt_u32", 10, hr)
        g.valu("v_mul_u32_u24", hw, RP, hr)
        g.valu("v_mul_u32_u24", tmp, PP, hc)
        g.valu("v_add3_u32", hw, hw, tmp, s64w)
        g.valu("v_lshl_add_u32", hw, HF, 4, hw)
        g.valu("v_add_u32", hw, HB, hw)
        if tile == 5:
            g.valu("v_mov_b32", tmp, DUMMY)
            g.cndmask(hw, tmp, hw)

    mk_srd(sWZ1, 10, 32768)

    def do_issue(ev):
        if ev[0] == "T":
            issue_T(int(ev[1]))
        elif ev == "R4":
            issue_R(4)
        elif ev == "Z":
            issue_wz1()
        elif ev == "Za":
            issue_wz1((0,))
        elif ev == "Zb":
            issue_wz1((1,))
        elif ev == "WARM":
            issue_warm()
        stamp("i" + ev)
    for ev in cfg.get("issue_a", ["T0", "Z"]):
        do_issue(ev)

    mk_srd(sWC, 14, 294912)
    mk_srd(sWZ2, 12, 32768)
    if STAMPS:
        g.salu("s_mov_b32", sWS[2], "0x10000000")
        g.salu("s_mov_b32", sWS[3], "0x00020000")
    g.valu("v_bfe_u32", t1, L, 4, 1)
    g.valu("v_lshlrev_b32", t0, 5, t1)
    g.valu("v_and_b32", t1, 1, L)
    g.valu("v_lshl_add_u32", t0, t1, 4, t0)
    g.valu("v_bfe_u32", t1, L, 1, 1)
    g.valu("v_lshl_add_u32", t0, t1, 3, t0)
    g.valu("v_bfe_u32", t1, L, 2, 2)
    g.valu("v_lshl_add_u32", t2, HF, 3, t1)
    g.valu("v_lshl_add_u32", t3, t2, 6, t0)
    g.valu("v_add_u32", vTR, sRING, t3)
    g.valu("v_lshl_add_u32", t3, t2, 8, t0)
    g.valu("v_xor_b32", t1, sW, t1)
    g.valu("v_lshl_add_u32", t3, t1, 6, t3)
    g.valu("v_add_u32", vTZ, HB, t3)
    g.valu("v_lshrrev_b32", t0, 4, I)
    g.valu("v_mul_u32_u24", t0, 4 * RP, t0)
    g.valu("v_and_b32", t1, 15, I)
    g.valu("v_mul_u32_u24", t2, PP, t1)
    g.valu("v_lshl_add_u32", t2, HF, 4, t2)
    g.valu("v_add_u32", t0, t0, t2)
    g.valu("v_add_u32", vB, HB, t0)
    g.valu("v_add_u32", t0, RP + PP, vB)
    g.valu("v_add_u32", vHW, s64w, t0)
    g.valu("v_xor_b32", t0, HF, t1)
    g.valu("v_lshlrev_b32", t0, 4, t0)
    g.valu("v_lshl_add_u32", vCs[0], I, 8, t0)
    for s in range(1, 8):
        g.valu("v_xor_b32", vCs[s], s << 5, vCs[0])
    g.valu("v_xor_b32", vXa[0], s64w, vCs[0])
    g.valu("v_xor_b32", vXa[1], 32, vXa[0])
    g.valu("v_add_u32", vLIN, sCDMA, vL16)
    g.salu("s_lshl_b32", sTMP, sW, 2)
    g.salu("s_add_u32", sTMP, sTMP, SB)
    g.valu("v_add_u32", vSW, sTMP, vL16)
    g.valu("v_lshlrev_b32", t0, 4, I)
    g.valu("v_add_u32", vSR, SB, t0)
    g.valu("v_bfe_u32", t0, I, 3, 1)
    g.valu("v_and_b32", t1, 3, I)
    g.valu("v_lshl_add_u32", t0, t0, 2, t1)
    g.valu("v_and_b32", t1, 1, t0)
    g.valu("v_lshlrev_b32", t1, 4, t1)
    g.salu("s_mov_b32", sTMP, "0x3f80")
    g.valu("v_lshlrev_b32", t1, t1, sTMP)
    g.valu("v_lshrrev_b32", t0, 1, t0)
    g.valu("v_lshrrev_b32", t2, 4, I)
    g.valu("v_lshl_add_u32", t0, t2, 2, t0)
    g.valu("v_bfe_u32", t2, I, 2, 1)
    g.valu("v_mov_b32", t3, 63)
    g.vcmp("v_cmp_eq_u32", t2, HF)
    g.cndmask(t0, t3, t0)
    for n0 in (0, 4):
        for n in range(n0, n0 + 4):
            pr = f"s[{90 + 2 * (n & 3)}:{91 + 2 * (n & 3)}]"
            g._emit(f"v_cmp_eq_u32 {pr}, {n}, {t0}", "valu", {f"s{90 + 2 * (n & 3)}", f"s{91 + 2 * (n & 3)}"}, t0.regs())
        for n in range(n0, n0 + 4):
            pr = f"s[{90 + 2 * (n & 3)}:{91 + 2 * (n & 3)}]"
            g._emit(f"v_cndmask_b32 {V(56 + n)}, 0, {t1}, {pr}", "valu", V(56 + n).regs(),
                    t1.regs() | {f"s{90 + 2 * (n & 3)}", f"s{91 + 2 * (n & 3)}"})

    def dfr0():
        g.salu("s_mov_b32", sL2E, "0x3fb8aa3b")
        g.salu("s_mov_b32", sINV, "0x3c000000")
        g.salu("s_mov_b32", sEPS, "0x3727c5ac")
        g.salu("s_sub_u32", sTBM, sTB, 32768 + 256)
        g.salu("s_sub_u32", sYM, sY0, 1)
        g.salu("s_sub_u32", sXM, sX0, 1)
        g.valu("v_mov_b32", vBIG, "0x7f000000")

    def dfr1():
        mk_srd(sXF, 4, 8388608)
        mk_srd(sOUT, 16, 8388608)
    deferred = {0: [(dfr0, 32), (lambda: ring_dma_setup(4, 0), 95), (lambda: ring_dma_setup(4, 1), 98), (dfr1, 36)],
                1: [(lambda: ring_dma_setup(5, 0), 105), (lambda: ring_dma_setup(5, 1), 108)],
                2: [(lambda: ring_hw_setup(4), 60), (lambda: ring_hw_setup(5), 75)]}
    if not cfg.get("defer", 1):
        for k_ in range(3):
            for f in deferred[k_]:
                f[0]()
        deferred = {}
    stamp("setup")
    for ev in cfg.get("issue_b", ["T1", "WARM", "T2" if cfg.get("order", [0, 1, 4, 2, 3, 5])[2] == 2 else "R4"]):
        do_issue(ev)
    stamp("issued")

    state = {"epoch": 0, "nread": 0}
    Q = []
    qpos = {"cur": 0, "pf": 0}
    reads_emitted = []

    def prefetch(depth=NB - 1):
        while qpos["pf"] < len(Q):
            it = Q[qpos["pf"]]
            if it.bsrc is None:
                if it.fn is not None and not it.emitted:
                    pass
                qpos["pf"] += 1
                continue
            ep = it.epoch() if callable(it.epoch) else it.epoch
            if ep is None or ep > state["epoch"]:
                break
            n = state["nread"]
            if n >= NB and not reads_emitted[n - NB].emitted:
                break
            ahead = sum(1 for x in reads_emitted[-NB:] if not x.emitted)
            if ahead >= depth:
                break
            it.buf = vBuf[n % NB]
            it.btok = g.ds_read(it.buf, it.bsrc[0], it.bsrc[1])
            reads_emitted.append(it)
            state["nread"] += 1
            qpos["pf"] += 1

    def btoks(it):
        toks = [it.btok]
        if cfg.get("pairwait", 1) and it.btok.idx >= g.done["lg"]:
            k = qpos["cur"] + 1
            if k < len(Q) and Q[k].btok is not None and not Q[k].emitted:
                if g.issued["lg"] - 1 - Q[k].btok.idx >= cfg.get("pairmin", 2):
                    toks.append(Q[k].btok)
        return toks

    def run(items, fillers, min_budget=12, spread=True):
        nm = sum(len(it.mf) for it in items)
        tot = sum(f[1] for f in fillers)
        per = max(min_budget, tot / nm if (nm and spread) else 0)
        fi = 0
        credit = 0
        tm = 0
        for it in items:
            assert Q[qpos["cur"]] is it
            if it.fn is not None:
                it.fn()
                it.emitted = True
                qpos["cur"] += 1
                continue
            prefetch()
            if it.btok is None:
                raise RuntimeError("B read not issued (epoch?)")
            pre_ = it.pre() if it.pre else []
            assert all(x is not None for x in pre_), "W not pumped"
            g.need(*btoks(it), *pre_)
            for k, (D, Aop, C) in enumerate(it.mf):
                g.mfma(D, Aop, it.buf, C)
                tm += 32
                if k == len(it.mf) - 1:
                    it.emitted = True
                    prefetch()
                credit = min(credit + per, 2 * per)
                while fi < len(fillers) and credit > 0:
                    f = fillers[fi]
                    if len(f) > 2 and f[2] > tm:
                        break
                    f[0]()
                    credit -= f[1]
                    fi += 1
            qpos["cur"] += 1
        while fi < len(fillers):
            fillers[fi][0]()
            fi += 1

    pending = []

    def sync(*toks):
        g.need(*toks, *pending)
        pending.clear()
        g.barrier()
        state["epoch"] += 1
        if state["epoch"] in cfg.get("skew", []):
            n_ = state["epoch"]
            g.raw(f"  s_mov_b32 s3, s52")
            g.raw(f"L_sk{n_}:")
            g.raw(f"  s_cmp_eq_u32 s3, 0")
            g.raw(f"  s_cbranch_scc1 L_skd{n_}")
            for _ in range(cfg.get("skewn", 0)):
                g.raw("  s_nop 0")
            g.raw(f"  s_sub_u32 s3, s3, 1")
            g.raw(f"  s_branch L_sk{n_}")
            g.raw(f"L_skd{n_}:")
            g.pos += 3

    z1tr = {}

    def z1_items(t, acc, epoch):
        its = []
        for s in range(8):
            C = 0 if s == 0 else acc
            its.append(Item([(acc, vWZ[s], C)], bsrc=(vCs[s], cslot(t)), epoch=epoch, pre=(lambda s=s: [z1tr[s]])))
        for s in range(2):
            its.append(Item([(acc, vID[s], acc)], bsrc=(vXa[s], xslot(t)), epoch=epoch))
        return its

    def stats_ops(acc, buf):
        s1, s2 = vT[0], vT[1]
        ops = []
        ops.append((lambda: g.valu("v_add_f32", s1, acc[0], acc[1]), 4))
        ops.append((lambda: g.valu("v_mul_f32", s2, acc[0], acc[0]), 4))
        ops.append((lambda: g.valu("v_fmac_f32", s2, acc[1], acc[1]), 4))
        for i in range(2, 16):
            ops.append((lambda i=i: g.valu("v_add_f32", s1, s1, acc[i]), 4))
            ops.append((lambda i=i: g.valu("v_fmac_f32", s2, acc[i], acc[i]), 4))
        ops.append((lambda: g.permlane32_swap(s1, s2), 8))
        ops.append((lambda: g.valu("v_add_f32", s1, s1, s2), 4))
        ops.append((lambda: pending.append(g.ds_write(vSW, s1, buf * 1024)), 4))
        return ops

    def norm_ops(acc, buf, hw, hoff):
        st = vLN[0:8]
        y = vLN[8:16]
        e = vLN[16:24]
        pk = vLN[24:28]
        a_, b_, m_, v_ = vT[2], vT[3], vT[4], vT[5]
        tk = {}
        ops = []

        def rd():
            tk[0] = g.ds_read(st[0:4], vSR, buf * 1024)
            tk[1] = g.ds_read(st[4:8], vSR, buf * 1024 + 512)
        ops.append((rd, 24))

        def red():
            g.need(tk[0], tk[1])
            g.valu("v_add_f32", st[0], st[0], st[1])
            g.valu("v_add_f32", st[4], st[4], st[5])
            g.valu("v_add_f32", st[2], st[2], st[3])
            g.valu("v_add_f32", st[6], st[6], st[7])
            g.valu("v_add_f32", st[0], st[0], st[2])
            g.valu("v_add_f32", st[4], st[4], st[6])
        ops.append((red, 28))

        def fin():
            g.valu("v_mul_f32", m_, sINV, st[0])
            g.valu("v_mul_f32", v_, sINV, st[4])
            g.valu("v_fma_f32", v_, "-" + str(m_), m_, v_)
            g.valu("v_max_f32", v_, 0, v_)
            g.valu("v_add_f32", v_, sEPS, v_)
            g.valu("v_rsq_f32", v_, v_)
            g.valu("v_mul_f32", a_, sL2E, v_)
            g.valu("v_mul_f32", b_, m_, a_)
        ops.append((fin, 40))
        for h in range(2):
            for i in range(8):
                ops.append((lambda i=i, h=h: g.valu("v_fma_f32", y[i], acc[8 * h + i], a_, "-" + str(b_)), 5))
            for i in range(8):
                ops.append((lambda i=i: g.valu("v_exp_f32", e[i], "-" + str(y[i])), 8))
            for i in range(8):
                ops.append((lambda i=i: g.valu("v_fma_f32", e[i], e[i], sL2E, sL2E), 5))
            for i in range(8):
                ops.append((lambda i=i: g.valu("v_rcp_f32", e[i], e[i]), 8))
            for i in range(8):
                ops.append((lambda i=i: g.valu("v_mul_f32", y[i], y[i], e[i]), 4))
            for i in range(4):
                ops.append((lambda i=i: g.valu("v_cvt_pk_bf16_f32", pk[i], y[2 * i], y[2 * i + 1]), 5))
            ops.append((lambda h=h: pending.append(g.ds_write(hw, pk, hoff + 32 * h)), 12))
        return ops

    def pk(op, d, *srcs, mods=""):
        w = d.regs()
        r = set()
        for x in srcs:
            r |= x.regs()
        g._emit(f"{op} {d}, " + ", ".join(str(x) for x in srcs) + mods, "valu", w, r, cost=5)

    def stats_pk_ops(acc, buf):
        S1, S2 = V(24, 2), V(26, 2)
        ops = [(lambda: pk("v_pk_add_f32", S1, acc[0:2], acc[2:4]), 5),
               (lambda: pk("v_pk_mul_f32", S2, acc[0:2], acc[0:2]), 5),
               (lambda: pk("v_pk_fma_f32", S2, acc[2:4], acc[2:4], S2), 5)]
        for i in range(2, 8):
            ops.append((lambda i=i: pk("v_pk_add_f32", S1, S1, acc[2 * i:2 * i + 2]), 5))
            ops.append((lambda i=i: pk("v_pk_fma_f32", S2, acc[2 * i:2 * i + 2], acc[2 * i:2 * i + 2], S2), 5))

        def fin():
            g.valu("v_add_f32", S1[0], S1[0], S1[1])
            g.valu("v_add_f32", S2[0], S2[0], S2[1])
            g.permlane32_swap(S1[0], S2[0])
            g.valu("v_add_f32", S1[0], S1[0], S2[0])
            pending.append(g.ds_write(vSW, S1[0], buf * 1024))
        return ops, [(fin, 28)]

    def norm_pk_clusters(acc, buf, hw, hoff):
        st = vPK
        y = vLN[0:16]
        e = vLN[16:32]
        po = vPO
        A2, B2 = V(28, 2), V(30, 2)
        a_, nb_, m_, v_ = V(28), V(30), V(29), V(31)
        BC = " op_sel_hi:[1,0,0]"
        tk = {}

        def rd():
            tk[0] = g.ds_read(st[0:4], vSR, buf * 1024)
            tk[1] = g.ds_read(st[4:8], vSR, buf * 1024 + 512)

        def red():
            g.need(tk[0], tk[1])
            g.valu("v_add_f32", st[0], st[0], st[1])
            g.valu("v_add_f32", st[4], st[4], st[5])
            g.valu("v_add_f32", st[2], st[2], st[3])
            g.valu("v_add_f32", st[6], st[6], st[7])
            g.valu("v_add_f32", st[0], st[0], st[2])
            g.valu("v_add_f32", st[4], st[4], st[6])

        def fin1():
            g.valu("v_mul_f32", m_, sINV, st[0])
            g.valu("v_mul_f32", v_, sINV, st[4])
            g.valu("v_fma_f32", v_, "-" + str(m_), m_, v_)
            g.valu("v_max_f32", v_, 0, v_)

        def fin2():
            g.valu("v_add_f32", v_, sEPS, v_)
            g.valu("v_rsq_f32", v_, v_)
            g.valu("v_mul_f32", a_, sL2E, v_)
            g.valu("v_mul_f32", nb_, "-" + str(m_), a_)
        head = [(red, 28), (fin1, 18), (fin2, 24)]
        P1 = [(lambda i=i: pk("v_pk_fma_f32", y[2 * i:2 * i + 2], acc[2 * i:2 * i + 2], A2, B2, mods=BC), 5) for i in range(8)]
        T1 = [(lambda i=i: g.valu("v_exp_f32", e[i], "-" + str(y[i])), 8) for i in range(16)]
        P2 = [(lambda i=i: pk("v_pk_fma_f32", e[2 * i:2 * i + 2], e[2 * i:2 * i + 2], S(62, 2), S(62, 2), mods=BC), 5) for i in range(8)]
        T2 = [(lambda i=i: g.valu("v_rcp_f32", e[i], e[i]), 8) for i in range(16)]
        P3 = [(lambda i=i: pk("v_pk_mul_f32", y[2 * i:2 * i + 2], y[2 * i:2 * i + 2], e[2 * i:2 * i + 2]), 5) for i in range(8)]
        C = []
        for h in range(2):
            for i in range(4):
                C.append((lambda i=i, h=h: g.valu("v_cvt_pk_bf16_f32", po[4 * h + i], y[8 * h + 2 * i], y[8 * h + 2 * i + 1]), 5))
            C.append((lambda h=h: pending.append(g.ds_write(hw, po[4 * h:4 * h + 4], hoff + 32 * h)), 12))
        return rd, head, P1, T1, P2, T2, P3, C

    class Feeder:
        def __init__(self, items):
            self.items = items
            self.i = 0
            self.k = 0
            self.count = 0

        def left(self):
            return self.i < len(self.items)

        def one(self):
            it = self.items[self.i]
            if self.k == 0:
                assert Q[qpos["cur"]] is it
                prefetch()
                assert it.btok is not None
                pre_ = it.pre() if it.pre else []
                assert all(x is not None for x in pre_), "W not pumped"
                g.need(*btoks(it), *pre_)
            D, Aop, C = it.mf[self.k]
            g.mfma(D, Aop, it.buf, C)
            self.count += 1
            self.k += 1
            if self.k == len(it.mf):
                it.emitted = True
                qpos["cur"] += 1
                self.i += 1
                self.k = 0
                prefetch()

    def host(fd, ops, pitch=22, guard=30):
        rem = sum(o[1] for o in ops)
        since = pitch
        for o in ops:
            if fd.left() and since >= pitch and rem >= guard:
                fd.one()
                since = 0
            o[0]()
            since += o[1]
            rem -= o[1]

    wp = {"tr": 0, "iss": 0}

    def w_issue_ops(n, tmin=None):
        ops = []
        tt = ((tmin,) if tmin is not None else ())
        for _ in range(n):
            k = wp["iss"]
            if k >= NG:
                break
            assert k - NGS < wp["tr"], "ring overflow"

            def head(k=k):
                if k >= NGS:
                    assert wtr[3 * (k - NGS) + 2] is not None
                    g.need(wtr[3 * (k - NGS) + 2])
                g.salu("s_add_u32", "m0", sRING, (k % NGS) * 3072)
                g.salu("s_mov_b32", sWO, wunit_src(3 * k)[1])
            ops.append((head, 14) + tt)
            for i in range(3):
                f = 3 * k + i
                if f >= NW:
                    break

                def dm(f=f, i=i, k=k):
                    srd, _ = wunit_src(f)
                    assert mstate["m0"] == ("w", k), "m0 clobbered inside a W group"
                    vo = vWD[i] if f < 72 else vWZ2[i]
                    wdma[f] = g.dma(vo, srd, sWO, off=1024 * i, flags=FW)
                    if f == min(3 * k + 2, NW - 1) and k == cfg.get("gX", 22) - 1:
                        assert state["epoch"] >= XF_EPOCH, "xf issued too early (slots still in use)"
                        for j in range(4):
                            xf_ops(j)[0][0]()
                ops.append((dm, 20) + tt)
            ops[-(min(3, NW - 3 * k)) - 1] = ((lambda head=head, k=k: (head(), mstate.__setitem__("m0", ("w", k)))), 14) + tt
            wp["iss"] += 1
        return ops

    def w_tr_ops(n, tmin=None):
        ops = []
        tt = ((tmin,) if tmin is not None else ())
        for _ in range(n):
            k = wp["tr"]
            if k >= wp["iss"]:
                break
            fs = [f for f in range(3 * k, 3 * k + 3) if f < NW]
            for i, f in enumerate(fs):
                def tr(f=f, i=i, k=k, last=fs[-1]):
                    if i == 0:
                        g.need(wdma[last])
                    d = wunit_dst(f)
                    o = (k % NGS) * 3072 + 1024 * i
                    g.ds_tr(d[0:2], vTR, o)
                    wtr[f] = g.ds_tr(d[2:4], vTR, o + 256)
                ops.append((tr, 16) + tt)
            wp["tr"] += 1
        return ops

    def pump_ops(n, lag=1, tmin=None):
        ops = []
        for _ in range(n):
            if wp["tr"] >= NG:
                break
            ops += w_tr_ops(1, tmin)
            while wp["iss"] < NG and wp["iss"] - NGS <= wp["tr"] - 1 - lag:
                ops += w_issue_ops(1, tmin)
        return ops

    def conv_item(p, dj, s, epoch):
        mf, fs = [], []
        for di in range(3):
            j = p - di
            if 0 <= j <= 3:
                f = widx[(di, dj, s)]
                fs.append(f)
                mf.append((vAcc[j], wreg(f), vAcc[j]))
        return Item(mf, bsrc=(vB, p * RP + dj * PP + 32 * s), epoch=epoch, pre=(lambda fs=fs: [wtr[f] for f in fs]))

    xftok = {}

    def xf_ops(j):
        def f():
            g.salu("s_add_u32", "m0", sCDMA, xfbuf(j))
            mstate["m0"] = None
            xftok[j] = [g.dma(vC0, sXF, sT[j], flags=FX), g.dma(vC1, sXF, sT[j], off=1024, flags=FX)]
        return [(f, 24)]

    def z2_pre_ops(j, vPK=vPK):
        ops = []
        for h in range(2):
            for i in range(4):
                ops.append((lambda i=i, h=h: g.valu("v_cvt_pk_bf16_f32", vPK[4 * h + i], vAcc[j][8 * h + 2 * i],
                                                    vAcc[j][8 * h + 2 * i + 1]), 5))
            ops.append((lambda h=h: pending.append(g.ds_write(vXa[h], vPK[4 * h:4 * h + 4], ebuf(j))), 12))
        return ops

    def z2_items(j, epoch, vAcc2=vAcc2):
        its = []
        for s in range(8):
            C = 0 if s == 0 else vAcc2
            its.append(Item([(vAcc2, vWZ[s], C)], bsrc=(vCs[s], ebuf(j)), epoch=epoch, pre=(lambda s=s: [wtr[72 + s]])))
        for s in range(2):
            its.append(Item([(vAcc2, vID[s], vAcc2)], bsrc=(vXa[s], xfbuf(j)), epoch=epoch))
        return its

    def z2_post_ops(j, vAcc2=vAcc2, vPO=vPO):
        ops = []
        for h in range(2):
            for i in range(4):
                ops.append((lambda i=i, h=h: g.valu("v_cvt_pk_bf16_f32", vPO[4 * h + i], vAcc2[8 * h + 2 * i],
                                                    vAcc2[8 * h + 2 * i + 1]), 5))
            ops.append((lambda h=h: pending.append(g.ds_write(vXa[h], vPO[4 * h:4 * h + 4], xfbuf(j))), 12))
        return ops

    def out_ops(j, vOS=vOS):
        tk = {}
        ops = []

        def rd():
            tk[0] = g.ds_read(vOS[0:4], vLIN, xfbuf(j))
            tk[1] = g.ds_read(vOS[4:8], vLIN, xfbuf(j) + 1024)
        ops.append((rd, 24))

        def st0():
            g.need(tk[0])
            g.bstore(vOS[0:4], vC0, sOUT, sT[j], flags=FS)

        def st1():
            g.need(tk[1])
            g.bstore(vOS[4:8], vC1, sOUT, sT[j], off=1024, flags=FS)
        ops.append((lambda: None, 24))
        ops.append((st0, 12))
        ops.append((st1, 12))
        return ops

    accs = {0: vAcc[0], 1: vAcc[1], 2: vAcc[2], 3: vAcc[3], 4: vAcc2, 5: vAcc3}
    hws = {0: (vHW, 0), 1: (vHW, RP), 2: (vHW, 2 * RP), 3: (vHW, 3 * RP), 4: (vHWA, 0), 5: (vHWB, 0)}
    ES = cfg.get("early_s", NS // 3)
    dj0 = DJ[0]
    done_groups = set()

    def groups(ps, djs, ss, epoch):
        out = []
        for p in ps:
            for dj in djs:
                for s in ss:
                    if (p, dj, s) in done_groups:
                        continue
                    done_groups.add((p, dj, s))
                    out.append(conv_item(p, dj, s, epoch))
        return out

    ORDER = cfg.get("order", [0, 1, 4, 2, 3, 5])
    stepof = {t: k for k, t in enumerate(ORDER)}
    WBATCH = cfg.get("wbatch", NGS)
    EARLY = cfg.get("early", [0, 0, 0, 16, 32, 48])
    seq = [(dj, s) for dj in DJ for s in range(8)]

    def tiles_for(p, dj):
        need = set()
        for r in (p, p + 4):
            if r == 0:
                need |= {4, 5} if dj > 0 else {4}
            elif r == 9:
                need.add(5)
            else:
                need.add((r - 1) % 4)
                if dj != 1:
                    need.add(4)
        return need

    def first_step(p, dj):
        k = max(stepof[t] + 2 for t in tiles_for(p, dj))
        for di in range(3):
            j = p - di
            if 0 <= j <= 3:
                k = max(k, stepof[j] + 2)
        return k

    def vis_epoch(p, dj):
        return max(stepof[t] + 3 for t in tiles_for(p, dj))

    def issue_tile(t):
        if t < 4:
            issue_T(t)
        else:
            issue_R(t)
    GPS = cfg.get("gps", [0, 3, 3, 3, 4, 5])
    ROLL = cfg.get("roll", 4)
    NLEAD = cfg.get("nlead", 3)
    plan = []
    have_prev = 0
    for k in range(6):
        t = ORDER[k]
        have0 = wp["tr"]
        acts = []
        if k >= 1 and k + NSLOT - 1 <= 5:
            acts = [(lambda k=k, i=i: act_piece(ORDER[k + NSLOT - 1], i), 24) for i in range(4)]
        if k == 0:
            for ev in cfg.get("issue_c", ["T3", "WARM"]):
                if ev == "WARM":
                    acts = acts + [(issue_warm, 80)]
                else:
                    acts = acts + [(lambda ev=ev, i=i: act_piece(int(ev[1]), i), 24) for i in range(4)]
        acts = acts + deferred.get(k, [])
        wb = []
        tr0 = []
        if k <= ROLL:
            tr0 = w_tr_ops(min(wp["iss"], 21) - wp["tr"])
        have = wp["tr"]
        if k < ROLL:
            for _ in range(GPS[k]):
                if wp["iss"] - wp["tr"] < NGS:
                    wb.append(w_issue_ops(1))
        else:
            if k == ROLL:
                wb.append(w_issue_ops(NGS - 1))
            for _ in range(GPS[k]):
                b = []
                if wp["tr"] < min(21, wp["iss"]) and wp["iss"] - wp["tr"] >= NGS - 1:
                    b += w_tr_ops(1)
                if wp["iss"] - wp["tr"] < NGS:
                    b += w_issue_ops(1)
                wb.append(b)
        z = z1_items(t, accs[t], k + 1)
        lead, rest = [], []
        budget = EARLY[k]
        for p in (1, 2, 3, 4):
            for gi, (dj, s_) in enumerate(seq[:have]):
                if first_step(p, dj) <= k and (p, dj, s_) not in done_groups and budget > 0:
                    it = groups([p], [dj], [s_], vis_epoch(p, dj))
                    budget -= len(it[0].mf)
                    if len(lead) < NLEAD and vis_epoch(p, dj) <= k and gi < have0:
                        lead += it
                    else:
                        rest += it
        Q.extend(lead + z + rest)
        plan.append((t, acts, wb, tr0, lead, z, rest))

    for k in range(6):
        t, acts, wb, tr0, lead, z, rest = plan[k]
        if k == 0:
            sync(*z1dma, *atok[t])
            for s in range(8):
                g.ds_tr(vWZ[s][0:2], vTZ, s * 4096)
                z1tr[s] = g.ds_tr(vWZ[s][2:4], vTZ, s * 4096 + 1024)
            pending.append(z1tr[7])
        else:
            sync(*atok[t])
        stamp(f"step{k}")
        if cfg.get("pk") and k >= 1:
            tp = ORDER[k - 1]
            rd, nhead, P1, T1, P2, T2, P3, Cc = norm_pk_clusters(accs[tp], (k - 1) & 1, *hws[tp])
            SP, Sfin = stats_pk_ops(accs[t], k & 1)
            rd()
            prefetch()
            for o in tr0:
                o[0]()
            if k < ROLL:
                vmo = [o for b in wb for o in b] + acts
            else:
                vmo = list(acts) + [o for b in wb for o in b]
            fd = Feeder(lead + z + rest)
            nz = sum(len(i.mf) for i in lead) + 10
            nv = len(vmo)
            c1 = cfg.get("pkv1", 0.5)
            v1 = vmo[:int(nv * c1)]
            v2 = vmo[int(nv * c1):]
            host(fd, v1[:3] + nhead + v1[3:])
            for o in P1: o[0]()
            host(fd, T1)
            while fd.count < nz:
                fd.one()
            host(fd, v2[:len(v2) // 2] or [(lambda: None, 30)], guard=10 ** 9 if False else 30)
            for o in P2: o[0]()
            for o in SP: o[0]()
            host(fd, Sfin + T2)
            for o in P3: o[0]()
            tail_ops = Cc + v2[len(v2) // 2:]
            host(fd, tail_ops, guard=0)
            while fd.left():
                fd.one()
            continue
        tp = ORDER[k - 1] if k else None
        nrm = norm_ops(accs[tp], (k - 1) & 1, *hws[tp]) if k else []
        st = stats_ops(accs[t], k & 1)
        if nrm:
            nrm[0][0]()
            nrm = nrm[1:]
        prefetch()
        for o in tr0:
            o[0]()
        pre_roll = k < ROLL
        if pre_roll:
            head = [o for b in wb for o in b] + acts
            wbs = []
        else:
            head = list(acts)
            wbs = list(wb)
        tail = []
        if wbs:
            tail = wbs.pop()
        elif len(head) > 6:
            pass
        ncov = cfg.get("ncov", 3)
        if not lead and not tr0:
            for o in head[:ncov]:
                o[0]()
            head = head[ncov:]
        body = []
        tot = sum(f[1] for f in nrm) or 1
        marks = [((i + 0.3) / max(1, len(wbs)), b) for i, b in enumerate(wbs)]
        acc_c = 0
        mi = 0
        hi = 0
        for idx, op in enumerate(nrm):
            if hi < len(head) and idx % 2 == 1:
                body.append(head[hi]); hi += 1
            while mi < len(marks) and marks[mi][0] * tot <= acc_c:
                body += marks[mi][1]; mi += 1
            body.append(op)
            acc_c += op[1]
        body += head[hi:]
        for m in marks[mi:]:
            body += m[1]
        items = lead + z + rest
        nm = sum(len(i.mf) for i in items)
        nz = sum(len(i.mf) for i in lead) + 10
        total = sum(f[1] for f in body + st + tail)
        per = max(24, total / nm) if rest else 24
        cum = 0
        pos = len(body)
        for i, f in enumerate(body):
            if cum >= per * nz + 60:
                pos = i
                break
            cum += f[1]
        st = [(f[0], f[1], 32 * nz) for f in st]
        fill = body[:pos] + st + body[pos:] + tail
        if cfg.get("fine2") == k:
            nf = []
            for i, f in enumerate(fill):
                if i % 10 == 0:
                    nf.append((lambda i=i: stamp(f"f{i}"), 0) + tuple(f[2:]))
                nf.append(f)
            fill = nf
        run(items, fill, min_budget=per, spread=False)

    sync()
    stamp("step6")
    ep6 = state["epoch"]
    PK6 = cfg.get("pk") and cfg.get("pk6", 1)
    if PK6:
        rd, nhead, P1, T1, P2, T2, P3, Cc = norm_pk_clusters(accs[5], 5 & 1, *hws[5])
        tr6 = w_tr_ops(min(wp["iss"], 21) - wp["tr"])
        have6 = wp["tr"]
        vmo = w_issue_ops(NGS - (wp["iss"] - wp["tr"]))
        vmo += pump_ops(cfg.get("pump6", 2))
        assert wp["tr"] <= 21
        rest = []
        budget = cfg.get("early6", 24)
        for p in (1, 2, 3, 4):
            for (dj, s_) in seq[:have6]:
                if (p, dj, s_) not in done_groups and budget > 0:
                    rest += groups([p], [dj], [s_], ep6)
                    budget -= len(rest[-1].mf)
        Q.extend(rest)
        rd()
        for o in tr6:
            o[0]()
        prefetch()
        fd = Feeder(rest)
        h2 = len(vmo) // 2
        host(fd, vmo[:3] + nhead + vmo[3:h2])
        for o in P1: o[0]()
        host(fd, T1)
        for o in P2: o[0]()
        host(fd, T2)
        for o in P3: o[0]()
        host(fd, Cc + vmo[h2:], guard=0)
        while fd.left():
            fd.one()
        sync()
        stamp("step7")
        ep6 = state["epoch"]
    dW = cfg.get("dW", 240)
    tRB = 0 if PK6 else cfg.get("tRB", 900)
    have = wp["tr"]
    gX = cfg.get("gX", 22)
    dX = cfg.get("dX", 2200)

    def t_arr(k):
        if k < have:
            return 0
        tt = (k - have + 1) * dW
        if k >= gX:
            tt += dX
        return tt
    avail = {}
    for k, key in enumerate(seq):
        avail[key] = 0 if k < have else max(t_arr(k) + 120, tRB + 180 if k >= 21 else 0)
    prio = cfg.get("prio", [1, 2, 0, 5, 3, 4])
    todo = [(p, dj, s) for p in prio for (dj, s) in seq if (p, dj, s) not in done_groups]
    needM = {j: {(p, dj, s) for p in (j, j + 1, j + 2) for (dj, s) in seq} - done_groups for j in range(4)}
    tW2 = max(t_arr(26) + 120, t_arr(gX - NGS) + dX + 200, tRB + 180)
    events = []
    t = 0
    rb_done = bool(PK6)
    z2_ready = {}
    z2_started = set()
    zorder = []
    z2_last = -10**9
    z2_wait = {}
    NZ = 2 if cfg.get("joint", 1) else 4
    while todo or len(z2_started) < NZ:
        if not rb_done and t >= tRB:
            events.append(("rb", t))
            rb_done = True
        cand = None
        for j in range(NZ):
            if j in z2_ready and j not in z2_started and t >= z2_ready[j] and t >= tW2 and t >= z2_last + 320 + 128:
                cand = ("z2", j)
                break
        if cand is None:
            for key in todo:
                p, dj, s = key
                if avail[(dj, s)] <= t and (rb_done or p not in (0, 5)):
                    cand = ("g", key)
                    break
        if cand is None:
            t += 32
            if not todo and not rb_done:
                events.append(("rb", t)); rb_done = True
            continue
        events.append(cand + (t,))
        if cand[0] == "z2":
            z2_started.add(cand[1])
            z2_last = t
            t += 320
            for j in list(z2_wait):
                if z2_wait[j] and (j - 1) in z2_started:
                    z2_wait[j] = False
                    z2_ready[j] = t + cfg.get("z2lag", 192)
                    events.append(("z2pre", j, t))
        else:
            key = cand[1]
            todo.remove(key)
            p = key[0]
            t += 32 * len([di for di in range(3) if 0 <= p - di <= 3])
            for j in range(4):
                needM[j].discard(key)
                if not needM[j] and j not in z2_ready and j not in z2_wait and j < NZ:
                    z2_wait[j] = True
            for j in list(z2_wait):
                if z2_wait[j] and (NSLOT == 4 or j < 2 or (j - 1) in z2_started):
                    z2_wait[j] = False
                    z2_ready[j] = t + cfg.get("z2lag", 192)
                    events.append(("z2pre", j, t))
    sys.stderr.write(f"modelled main phase {t} cycles; z2 starts {[e[2] for e in events if e[0]=='z2']}\n")

    items = []
    fillers = []
    epochs = {}
    if not PK6:
        fillers += [(f[0], f[1], 0) for f in norm_ops(accs[5], 5 & 1, *hws[5])]
    pump_timed = w_issue_ops(NGS - (wp["iss"] - wp["tr"]), tmin=0)
    for k in range(have, NG):
        tm_ = t_arr(k) - 60
        if k >= 21:
            tm_ = max(tm_, tRB)
        pump_timed += pump_ops(1, tmin=tm_)
    xf_timed = []
    timed = []
    for f in pump_timed + xf_timed:
        timed.append(f)
    last_post = None
    for ev in events:
        if ev[0] == "g":
            p, dj, s = ev[1]
            ep = ep6 if (PK6 or p not in (0, 5)) else (lambda: epochs.get("rb"))
            items.append(conv_item(p, dj, s, ep))
        elif ev[0] == "rb":
            def f_rb():
                sync()
                epochs["rb"] = state["epoch"]
                stamp("step7")
            items.append(Item([], fn=f_rb))
            items[-1].kind = ("rb", ev[1])
        elif ev[0] == "z2pre":
            j = ev[1]
            timed += [(f[0], f[1], ev[2]) for f in z2_pre_ops(j)]
        elif ev[0] == "z2":
            j = ev[1]

            def f_z(j=j):
                sync(*xftok[j])
                epochs[("z", j)] = state["epoch"]
                stamp(f"z2_{j}")
            it = Item([], fn=f_z)
            it.kind = ("z2sync", ev[2], j)
            items.append(it)
            items += z2_items(j, (lambda j=j: epochs.get(("z", j))))
            timed += [(f[0], f[1], ev[2] + 320 + 64) for f in z2_post_ops(j)]
            if j > 0:
                timed += [(f[0], f[1], ev[2] + 32) for f in out_ops(zorder[-1])]
            zorder.append(j)
    timed.sort(key=lambda f: f[2])
    allf = fillers + timed
    Q.extend(items)

    fi = 0
    tm = 0
    credit = 0
    per = cfg.get("per", 16)
    for it in items:
        assert Q[qpos["cur"]] is it
        if it.fn is not None:
            tl = it.kind[1]
            while fi < len(allf) and allf[fi][2] <= tl:
                allf[fi][0]()
                fi += 1
            it.fn()
            it.emitted = True
            qpos["cur"] += 1
            continue
        prefetch()
        if it.btok is None:
            raise RuntimeError("B read not issued (epoch?)")
        pre = it.pre() if it.pre else []
        while any(x is None for x in pre):
            allf[fi][0]()
            fi += 1
            pre = it.pre()
        g.need(*btoks(it), *pre)
        for k, (D, Aop, C) in enumerate(it.mf):
            g.mfma(D, Aop, it.buf, C)
            tm += 32
            c0 = g.cost
            if k == len(it.mf) - 1:
                it.emitted = True
                prefetch()
            credit = min(credit, 0) + cfg.get("gap", 20) - (g.cost - c0)
            while fi < len(allf) and credit > 0 and allf[fi][2] <= tm:
                allf[fi][0]()
                credit -= allf[fi][1]
                fi += 1
        qpos["cur"] += 1
    while fi < len(allf):
        allf[fi][0]()
        fi += 1
    if NZ == 2:
        vS3 = [V(224 + i) for i in range(10)]
        p2 = z2_pre_ops(2, vPK)
        for f in p2:
            f[0]()
        for i in range(8):
            g.valu("v_add_u32", vS3[i], WB, vCs[i])
        for h in range(2):
            g.valu("v_add_u32", vS3[8 + h], WB, vXa[h])
            for i in range(4):
                g.valu("v_cvt_pk_bf16_f32", vOS[4 * h + i], vAcc[3][8 * h + 2 * i], vAcc[3][8 * h + 2 * i + 1])
            pending.append(g.ds_write(vS3[8 + h], vOS[4 * h:4 * h + 4], 0))
        sync(*xftok[2], *xftok[3])
        stamp("z2_2")
        e_ = state["epoch"]
        za, zb = z2_items(2, e_, vAcc2), z2_items(3, e_, vAcc3)
        for i in range(8):
            zb[i].bsrc = (vS3[i], 0)
        zz = za[:5] + [x for pr in zip(za[5:], zb[:5]) for x in pr] + zb[5:]
        Q.extend(zz)
        run(zz, out_ops(1, vPK) + [(f[0], f[1], 32 * 17) for f in z2_post_ops(2, vAcc2, vPO)], min_budget=24, spread=False)
        for f in z2_post_ops(3, vAcc3, vOS):
            f[0]()
        sync()
        stamp("z2_3")
        o2, o3 = out_ops(2, vAcc2[0:8]), out_ops(3, vAcc2[8:16])
        o2[0][0](); o3[0][0]()
        for f in o2[2:] + o3[2:]:
            f[0]()
    else:
        sync()
        for f in out_ops(zorder[-1]):
            f[0]()
    stamp("end")
    if STAMPS:
        g.raw("  s_waitcnt vmcnt(0)")
        g.raw("  s_memtime s[74:75]")
        g.raw("  s_memrealtime s[98:99]")
        g.raw("  s_waitcnt lgkmcnt(0)")
        n = len(stamps)
        g.raw(f"  s_mov_b32 s{76 + n}, s74")
        n += 1
        stamps.append("drained")
        g.raw("  s_lshl_b32 s3, s2, 2")
        g.raw("  s_add_u32 s3, s3, s52")
        g.raw("  s_lshl_b32 s3, s3, 7")
        g.raw("  v_mov_b32 v0, 0")
        for i in range(n):
            g.raw(f"  v_mov_b32 v1, s{76 + i}")
            g.raw(f"  buffer_store_dword v1, v0, s[48:51], s3 offen offset:{4 * i}")
        g.raw("  v_mov_b32 v1, s96")
        g.raw(f"  buffer_store_dword v1, v0, s[48:51], s3 offen offset:{4 * 30}")
        g.raw("  v_mov_b32 v1, s98")
        g.raw(f"  buffer_store_dword v1, v0, s[48:51], s3 offen offset:{4 * 31}")
    g.raw("L_end:")
    g.raw("  s_endpgm")
    tail = """.section .rodata,"a"
.p2align 6
.amdhsa_kernel standalone__controlnet__diffusion_kernel
  .amdhsa_next_free_vgpr 512
  .amdhsa_next_free_sgpr 102
  .amdhsa_accum_offset 256
  .amdhsa_group_segment_fixed_size 0
  .amdhsa_kernarg_size 72
  .amdhsa_user_sgpr_count 2
  .amdhsa_user_sgpr_kernarg_segment_ptr 1
  .amdhsa_system_sgpr_workgroup_id_x 1
.end_amdhsa_kernel
"""
    sys.stderr.write(f"est issue cycles {g.cost}, nops {g.nops}, lines {len(g.lines)}, NS {NS}\n")
    if STAMPS:
        open(cfg.get("_out", "x") + ".names", "w").write(",".join(stamps))
    return "\n".join(hdr) + "\n" + g.text() + tail


if __name__ == "__main__":
    import json
    out = sys.argv[1]
    cfg = json.loads(sys.argv[2]) if len(sys.argv) > 2 else {}
    cfg["_out"] = out
    open(out, "w").write(build(cfg))
```

```python
import sys
from dsl import *

RP = 4928
PP = 272
import os
NSLOT = int(os.environ.get('NSLOT', 4))
AB = 0
HB = AB + NSLOT * 16384
SB = HB + 10 * RP
WB = SB + 2048
NS = (163840 - WB) // 12288 * 3
LDS_BYTES = WB + NS * 4096
assert LDS_BYTES <= 163840
SLOT = {}
def cslot(t): return AB + SLOT[t] * 16384
def xslot(t): return AB + SLOT[t] * 16384 + 8192
if NSLOT == 3:
    def xfbuf(j): return AB + j * 8192
    def ebuf(j): return AB + 2 * 16384 + (j & 1) * 8192
    XF_EPOCH = 6
    DUMMY = AB + 2 * 16384
else:
    def xfbuf(j): return AB + 2 * 16384 + j * 8192
    def ebuf(j): return AB + j * 8192
    XF_EPOCH = 5
    DUMMY = AB

sXF, sX, sC, sOUT, sWZ1, sWZ2, sWC, sWS = (S(20, 4), S(24, 4), S(28, 4), S(32, 4), S(36, 4), S(40, 4), S(44, 4), S(48, 4))
sW = S(52); sTB = S(53); sRING = S(54); sZ1ST = S(55); sCDMA = S(56); s64w = S(57)
sYM = S(58); sXM = S(59); sY0 = S(60); sX0 = S(61); sL2E = S(62); sINV = S(63); sEPS = S(64); sTBM = S(65)
sT = [S(66), S(67), S(68), S(69)]
sTMP = S(70); sTMP2 = S(71); sTMP3 = S(72); sWO = S(73)

vLIN = V(1); vC0 = V(2); vC1 = V(3); vWS = V(4); vTR = V(5); vTZ = V(6); vB = V(7)
vCs = [V(8 + s) for s in range(8)]
vHW = V(16); vHWA = V(17); vHWB = V(18); vSW = V(19); vSR = V(20); vXa = [V(21), V(22)]
vT = [V(23 + i) for i in range(9)]
NB = 6
vBuf = [V(32 + 4 * i, 4) for i in range(NB)]
vID = [V(56, 4), V(60, 4)]
vRG = {4: [V(64), V(65)], 5: [V(66), V(67)]}
vWD = [V(4), V(92), V(93)]
vWZ2 = [V(4), V(94), V(95)]
vPK = V(68, 8)
vPO = V(76, 8)
vOS = V(84, 8)
vAcc3 = V(96, 16)
vAcc2 = V(112, 16)
vAcc = [V(128 + 16 * j, 16) for j in range(4)]
vWZ = [V(192 + 4 * f, 4) for f in range(8)]
vLN = V(224, 32)


def wreg(f):
    return A(4 * f, 4) if f < 64 else V(224 + 4 * (f - 64), 4)


class Item:
    def __init__(self, mf, bsrc=None, epoch=0, pre=None, fn=None):
        self.mf = mf
        self.bsrc = bsrc
        self.epoch = epoch
        self.pre = pre
        self.fn = fn
        self.btok = None
        self.buf = None
        self.emitted = False


def build(cfg):
    g = G()
    hdr = [f"; @launch grid=(256,1,1) block=(256,1,1) lds={LDS_BYTES}",
           '.amdgcn_target "amdgcn-amd-amdhsa--gfx950"', ".text",
           ".globl standalone__controlnet__diffusion_kernel", ".p2align 8",
           ".type standalone__controlnet__diffusion_kernel,@function",
           "standalone__controlnet__diffusion_kernel:"]
    stamps = []
    STAMPS = cfg.get("stamps")

    def stamp(name):
        if not STAMPS:
            return
        if isinstance(STAMPS, list) and name not in STAMPS:
            return
        n = len(stamps)
        assert n < 19
        stamps.append(name)
        sys.stderr.write(f"  stamp {name}: est {g.cost} instrs {len(g.lines)} nops {g.nops}\n")
        g.raw("  s_memtime s[74:75]")
        g.raw("  s_waitcnt lgkmcnt(0)")
        g.done["lg"] = g.issued["lg"]
        g.raw(f"  s_mov_b32 s{76 + n}, s74")
        g.pos += 3

    DJ = cfg.get("dj_order", (1, 0, 2))
    for k_, t_ in enumerate(cfg.get("order", [0, 1, 4, 2, 3, 5])):
        SLOT[t_] = k_ % NSLOT
    FA = cfg.get("fa", " nt"); FX = cfg.get("fx", " nt"); FS = cfg.get("fs", " nt"); FWARM = cfg.get("fwarm", ""); FW = cfg.get("fw", ""); FZ = cfg.get("fz", "")

    g.sop("s_cmp_ge_u32 s2, 256", r={"s2"})
    g.sop("s_cbranch_scc1 L_end")
    g.raw("  s_load_dwordx16 s[4:19], s[0:1], 0")
    if STAMPS:
        g.raw("  s_load_dwordx2 s[48:49], s[0:1], 64")
        g.raw("  s_memrealtime s[96:97]")
    g.pos += 2
    stamp("start")
    L = V(96); I = V(97); HF = V(99); t0 = V(100); t1 = V(101); t2 = V(98); t3 = V(102); vZS = V(103)
    vL16 = V(104)
    g.valu("v_and_b32", L, 63, V(0))
    g.valu("v_lshrrev_b32", t0, 6, V(0))
    g.readfirstlane(sW, t0)
    g.valu("v_and_b32", I, 31, V(0))
    g.valu("v_bfe_u32", HF, V(0), 5, 1)
    if cfg.get("codepf"):
        nl = cfg["codepf"]
        g.raw("  s_getpc_b64 s[90:91]")
        g.raw("L_pc:")
        g.pos += 1
        g.salu("s_lshr_b32", sTMP, "s2", 3)
        g.salu("s_lshl_b32", sTMP, sTMP, 2)
        g.salu("s_add_u32", sTMP, sTMP, sW)
        g.salu("s_mul_i32", sTMP, sTMP, nl * 128)
        g.valu("v_and_b32", t0, nl - 1, V(0))
        g.valu("v_lshlrev_b32", t0, 7, t0)
        g.valu("v_add_u32", t0, sTMP, t0)
        g.valu("v_min_u32", t0, "L_end-L_pc", t0)
        g.valu("v_mov_b32", t1, S(91))
        g._emit(f"v_add_co_u32 {t0}, vcc, s90, {t0}", "valu", t0.regs() | {"vcc"}, t0.regs())
        g._emit(f"v_addc_co_u32 {t1}, vcc, 0, {t1}, vcc", "valu", t1.regs() | {"vcc"}, t1.regs() | {"vcc"})
        g.raw("  global_load_dword a235, v[100:101], off")
        g.pos += 1
        g._tok("vm")
    g.salu("s_and_b32", sTMP, "s2", 7)
    g.salu("s_lshl_b32", sTMP, sTMP, 5)
    g.salu("s_lshr_b32", sTMP2, "s2", 3)
    g.salu("s_add_u32", sTMP, sTMP, sTMP2)
    g.salu("s_lshr_b32", sTMP3, sTMP, 3)
    g.salu("s_lshl_b32", sTB, sTMP3, 18)
    g.salu("s_and_b32", sY0, sTMP3, 15)
    g.salu("s_lshl_b32", sY0, sY0, 3)
    g.salu("s_and_b32", sX0, sTMP, 7)
    g.salu("s_lshl_b32", sTMP3, sX0, 12)
    g.salu("s_lshl_b32", sX0, sX0, 4)
    g.salu("s_add_u32", sTB, sTB, sTMP3)
    g.salu("s_mov_b32", sT[0], sTB)
    for j in range(1, 4):
        g.salu("s_add_u32", sT[j], sTB, j * 32768)
    g.salu("s_lshl_b32", sCDMA, sW, 11)
    g.salu("s_lshl_b32", s64w, sW, 6)
    g.salu("s_lshr_b32", sTMP, sW, 1)
    g.salu("s_lshl_b32", sTMP, sTMP, 17)
    g.salu("s_and_b32", sTMP2, sW, 1)
    g.salu("s_lshl_b32", sTMP2, sTMP2, 3)
    g.valu("v_lshrrev_b32", t3, 4, L)
    g.valu("v_add_u32", t0, sTMP2, t3)
    g.valu("v_and_b32", t1, 15, L)
    g.valu("v_xor_b32", t2, t1, t0)
    g.valu("v_lshlrev_b32", t2, 4, t2)
    g.valu("v_lshl_add_u32", t2, t0, 8, t2)
    g.valu("v_add_u32", vC0, sTMP, t2)
    g.valu("v_add_u32", t0, 4, t0)
    g.valu("v_xor_b32", t2, t1, t0)
    g.valu("v_lshlrev_b32", t2, 4, t2)
    g.valu("v_lshl_add_u32", t2, t0, 8, t2)
    g.valu("v_add_u32", t2, sTMP, t2)
    g.valu("v_subrev_u32", vC1, 1024, t2)
    g.valu("v_bfe_u32", t0, L, 2, 2)
    g.valu("v_xor_b32", t0, t0, t3)
    g.valu("v_lshlrev_b32", t0, 6, t0)
    g.valu("v_lshl_add_u32", t0, t3, 8, t0)
    g.valu("v_and_b32", t1, 3, L)
    g.valu("v_lshl_add_u32", vZS, t1, 4, t0)
    g.valu("v_lshrrev_b32", t0, 2, L)
    g.valu("v_lshlrev_b32", t0, 8, t0)
    g.valu("v_lshl_add_u32", t0, t1, 4, t0)
    g.valu("v_add_u32", vWS, s64w, t0)
    g.valu("v_add_u32", vWD[1], 98304 - 1024, vWS)
    g.valu("v_add_u32", vWD[2], 2 * (98304 - 1024), vWS)
    g.valu("v_add_u32", vWZ2[1], 4096 - 1024, vWS)
    g.valu("v_add_u32", vWZ2[2], 2 * (4096 - 1024), vWS)
    g.valu("v_lshlrev_b32", vL16, 4, L)
    g.salu("s_mul_i32", sTMP3, sW, NS * 1024)
    g.salu("s_add_u32", sRING, sTMP3, WB)
    g.salu("s_lshl_b32", sZ1ST, sW, 13)
    g.raw("  s_waitcnt lgkmcnt(0)")
    g.pos += 1

    def mk_srd(srd, p, n):
        g.salu("s_mov_b32", srd[0], S(p))
        g.salu("s_mov_b32", srd[1], S(p + 1))
        g.salu("s_mov_b32", srd[2], n)
        g.salu("s_mov_b32", srd[3], "0x00020000")
    mk_srd(sC, 8, 8388608)
    mk_srd(sX, 6, 8388608)

    atok = {}
    mstate = {"m0": None}

    def issue_T(j):
        g.salu("s_add_u32", "m0", sCDMA, cslot(j))
        a = g.dma(vC0, sC, sT[j], flags=FA)
        b = g.dma(vC1, sC, sT[j], off=1024, flags=FA)
        g.salu("s_add_u32", "m0", sCDMA, xslot(j))
        c = g.dma(vC0, sX, sT[j], flags=FA)
        d = g.dma(vC1, sX, sT[j], off=1024, flags=FA)
        atok[j] = [a, b, c, d]

    def act_piece(t, i):
        srd, base = ((sC, cslot(t)), (sX, xslot(t)))[i >> 1]
        g.salu("s_add_u32", "m0", sCDMA, base)
        mstate["m0"] = None
        if t < 4:
            tok = g.dma((vC0, vC1)[i & 1], srd, sT[t], off=1024 * (i & 1), flags=FA)
        else:
            tok = g.dma(vRG[t][i & 1], srd, 0, off=1024 * (i & 1), flags=FA)
        atok.setdefault(t, []).append(tok)

    def issue_R(t):
        toks = []
        for srd, base in ((sC, cslot(t)), (sX, xslot(t))):
            g.salu("s_add_u32", "m0", sCDMA, base)
            toks.append(g.dma(vRG[t][0], srd, 0, flags=FA))
            toks.append(g.dma(vRG[t][1], srd, 0, off=1024, flags=FA))
        atok[t] = toks

    worder = []
    for dj in DJ:
        for s in range(8):
            for di in range(3):
                worder.append((di, dj, s))
    widx = {k: f for f, k in enumerate(worder)}
    NW = 80
    wdma = [None] * NW
    wtr = [None] * NW

    def wunit_src(f):
        if f < 72:
            di, dj, s = worder[f]
            return sWC, ((di * 3 + dj) * 128 + 16 * s) * 256
        return sWZ2, (f - 72) * 4096

    def wunit_dst(f):
        return wreg(f) if f < 72 else vWZ[f - 72]

    NG = 27
    NGS = NS // 3

    def issue_WG(k):
        g.salu("s_add_u32", "m0", sRING, (k % NGS) * 3072)
        f0 = 3 * k
        srd, off = wunit_src(f0)
        g.salu("s_mov_b32", sTMP, off)
        for i in range(3):
            f = f0 + i
            if f >= NW:
                break
            vo = vWD[i] if f < 72 else vWZ2[i]
            wdma[f] = g.dma(vo, srd, sTMP, off=1024 * i, flags=FW)

    def tr_WG(k):
        fs = [f for f in range(3 * k, 3 * k + 3) if f < NW]
        g.need(wdma[fs[-1]])
        for i, f in enumerate(fs):
            d = wunit_dst(f)
            o = (k % NGS) * 3072 + 1024 * i
            g.ds_tr(d[0:2], vTR, o)
            wtr[f] = g.ds_tr(d[2:4], vTR, o + 256)

    z1dma = []

    def issue_wz1(hs=(0, 1)):
        for h in hs:
            g.salu("s_add_u32", "m0", sZ1ST, HB + h * 4096)
            g.salu("s_add_u32", sTMP, sZ1ST, h * 4096)
            for m in range(4):
                z1dma.append(g.dma(vZS, sWZ1, sTMP, off=m * 1024, flags=FZ))

    def issue_warm():
        g.salu("s_lshr_b32", sTMP2, "s2", 3)
        g.salu("s_mul_i32", sTMP, sTMP2, 9216)
        g.salu("s_lshl_b32", sTMP3, sW, 10)
        g.salu("s_add_u32", sTMP, sTMP, sTMP3)
        g.bload(A(240, 4), vL16, sWC, sTMP, flags=FWARM)
        g.salu("s_add_u32", sTMP, sTMP, 4096)
        g.bload(A(244, 4), vL16, sWC, sTMP, flags=FWARM)
        g.valu("v_and_b32", t0, 0xf0, vL16)
        g.salu("s_mul_i32", sTMP, sTMP2, 9216)
        g.salu("s_lshl_b32", sTMP3, sW, 8)
        g.salu("s_add_u32", sTMP, sTMP, sTMP3)
        g.salu("s_add_u32", sTMP, sTMP, 8192)
        g.bload(A(248, 4), t0, sWC, sTMP, flags=FWARM)
        g.salu("s_lshl_b32", sTMP, sTMP2, 10)
        g.salu("s_add_u32", sTMP, sTMP, sTMP3)
        g.bload(A(252, 4), t0, sWZ2, sTMP, flags=FWARM)
        if cfg.get("warm_z1", True):
            g.bload(A(236, 4), t0, sWZ1, sTMP, flags=FWARM)

    vBIG = V(105)

    def ring_coords(tile, idx, hr, hc, tmp):
        if tile == 4:
            g.vcmp("v_cmp_gt_u32", 16, idx)
            g.valu("v_lshrrev_b32", hr, 1, idx)
            g.valu("v_add_u32", hr, 1, hr)
            g.valu("v_and_b32", hc, 1, idx)
            g.valu("v_mul_u32_u24", hc, 17, hc)
            g.valu("v_subrev_u32", tmp, 16, idx)
            g.cndmask(hr, 0, hr)
            g.cndmask(hc, tmp, hc)
        else:
            g.vcmp("v_cmp_gt_u32", 18, idx)
            g.valu("v_subrev_u32", tmp, 2, idx)
            g.valu("v_mov_b32", hr, 9)
            g.cndmask(hr, 0, hr)
            g.cndmask(hc, tmp, idx)
            g.vcmp("v_cmp_gt_u32", 20, idx)
            g.valu("v_mov_b32", tmp, 64)
            g.cndmask(hr, tmp, hr)

    hr_, hc_, tmp_, idx_, sw_, d_ = V(106), V(107), V(108), V(109), V(110), V(111)

    def ring_dma_setup(tile, e):
        hr, hc, tmp, idx, sw = hr_, hc_, tmp_, idx_, sw_
        dst = vRG[tile][e]
        g.salu("s_lshl_b32", sTMP2, sW, 3)
        g.salu("s_add_u32", sTMP2, sTMP2, 4 * e)
        g.valu("v_lshrrev_b32", idx, 4, L)
        g.valu("v_add_u32", idx, sTMP2, idx)
        ring_coords(tile, idx, hr, hc, tmp)
        g.valu("v_add_u32", tmp, sYM, hr)
        g.valu("v_add_u32", d_, sXM, hc)
        g.valu("v_max_u32", tmp, tmp, d_)
        if tile == 5:
            g.valu("v_lshlrev_b32", d_, 3, hr)
            g.valu("v_max_u32", tmp, tmp, d_)
        g.vcmp("v_cmp_gt_u32", 128, tmp)
        g.valu("v_lshlrev_b32", dst, 15, hr)
        g.valu("v_lshl_add_u32", dst, hc, 8, dst)
        g.valu("v_add_u32", dst, sTBM, dst)
        g.valu("v_xor_b32", sw, idx, L)
        g.valu("v_and_b32", sw, 15, sw)
        g.valu("v_lshl_add_u32", dst, sw, 4, dst)
        if e == 1:
            g.valu("v_subrev_u32", dst, 1024, dst)
        g.cndmask(dst, vBIG, dst)

    def ring_hw_setup(tile):
        hr, hc, tmp = hr_, hc_, tmp_
        ring_coords(tile, I, hr, hc, tmp)
        hw = vHWA if tile == 4 else vHWB
        if tile == 5:
            g.vcmp("v_cmp_gt_u32", 10, hr)
        g.valu("v_mul_u32_u24", hw, RP, hr)
        g.valu("v_mul_u32_u24", tmp, PP, hc)
        g.valu("v_add3_u32", hw, hw, tmp, s64w)
        g.valu("v_lshl_add_u32", hw, HF, 4, hw)
        g.valu("v_add_u32", hw, HB, hw)
        if tile == 5:
            g.valu("v_mov_b32", tmp, DUMMY)
            g.cndmask(hw, tmp, hw)

    mk_srd(sWZ1, 10, 32768)

    def do_issue(ev):
        if ev[0] == "T":
            issue_T(int(ev[1]))
        elif ev == "R4":
            issue_R(4)
        elif ev == "Z":
            issue_wz1()
        elif ev == "Za":
            issue_wz1((0,))
        elif ev == "Zb":
            issue_wz1((1,))
        elif ev == "WARM":
            issue_warm()
        stamp("i" + ev)
    for ev in cfg.get("issue_a", ["T0", "Z"]):
        do_issue(ev)

    mk_srd(sWC, 14, 294912)
    mk_srd(sWZ2, 12, 32768)
    if STAMPS:
        g.salu("s_mov_b32", sWS[2], "0x10000000")
        g.salu("s_mov_b32", sWS[3], "0x00020000")
    g.valu("v_bfe_u32", t1, L, 4, 1)
    g.valu("v_lshlrev_b32", t0, 5, t1)
    g.valu("v_and_b32", t1, 1, L)
    g.valu("v_lshl_add_u32", t0, t1, 4, t0)
    g.valu("v_bfe_u32", t1, L, 1, 1)
    g.valu("v_lshl_add_u32", t0, t1, 3, t0)
    g.valu("v_bfe_u32", t1, L, 2, 2)
    g.valu("v_lshl_add_u32", t2, HF, 3, t1)
    g.valu("v_lshl_add_u32", t3, t2, 6, t0)
    g.valu("v_add_u32", vTR, sRING, t3)
    g.valu("v_lshl_add_u32", t3, t2, 8, t0)
    g.valu("v_xor_b32", t1, sW, t1)
    g.valu("v_lshl_add_u32", t3, t1, 6, t3)
    g.valu("v_add_u32", vTZ, HB, t3)
    g.valu("v_lshrrev_b32", t0, 4, I)
    g.valu("v_mul_u32_u24", t0, 4 * RP, t0)
    g.valu("v_and_b32", t1, 15, I)
    g.valu("v_mul_u32_u24", t2, PP, t1)
    g.valu("v_lshl_add_u32", t2, HF, 4, t2)
    g.valu("v_add_u32", t0, t0, t2)
    g.valu("v_add_u32", vB, HB, t0)
    g.valu("v_add_u32", t0, RP + PP, vB)
    g.valu("v_add_u32", vHW, s64w, t0)
    g.valu("v_xor_b32", t0, HF, t1)
    g.valu("v_lshlrev_b32", t0, 4, t0)
    g.valu("v_lshl_add_u32", vCs[0], I, 8, t0)
    for s in range(1, 8):
        g.valu("v_xor_b32", vCs[s], s << 5, vCs[0])
    g.valu("v_xor_b32", vXa[0], s64w, vCs[0])
    g.valu("v_xor_b32", vXa[1], 32, vXa[0])
    g.valu("v_add_u32", vLIN, sCDMA, vL16)
    g.salu("s_lshl_b32", sTMP, sW, 2)
    g.salu("s_add_u32", sTMP, sTMP, SB)
    g.valu("v_add_u32", vSW, sTMP, vL16)
    g.valu("v_lshlrev_b32", t0, 4, I)
    g.valu("v_add_u32", vSR, SB, t0)
    g.valu("v_bfe_u32", t0, I, 3, 1)
    g.valu("v_and_b32", t1, 3, I)
    g.valu("v_lshl_add_u32", t0, t0, 2, t1)
    g.valu("v_and_b32", t1, 1, t0)
    g.valu("v_lshlrev_b32", t1, 4, t1)
    g.salu("s_mov_b32", sTMP, "0x3f80")
    g.valu("v_lshlrev_b32", t1, t1, sTMP)
    g.valu("v_lshrrev_b32", t0, 1, t0)
    g.valu("v_lshrrev_b32", t2, 4, I)
    g.valu("v_lshl_add_u32", t0, t2, 2, t0)
    g.valu("v_bfe_u32", t2, I, 2, 1)
    g.valu("v_mov_b32", t3, 63)
    g.vcmp("v_cmp_eq_u32", t2, HF)
    g.cndmask(t0, t3, t0)
    for n0 in (0, 4):
        for n in range(n0, n0 + 4):
            pr = f"s[{90 + 2 * (n & 3)}:{91 + 2 * (n & 3)}]"
            g._emit(f"v_cmp_eq_u32 {pr}, {n}, {t0}", "valu", {f"s{90 + 2 * (n & 3)}", f"s{91 + 2 * (n & 3)}"}, t0.regs())
        for n in range(n0, n0 + 4):
            pr = f"s[{90 + 2 * (n & 3)}:{91 + 2 * (n & 3)}]"
            g._emit(f"v_cndmask_b32 {V(56 + n)}, 0, {t1}, {pr}", "valu", V(56 + n).regs(),
                    t1.regs() | {f"s{90 + 2 * (n & 3)}", f"s{91 + 2 * (n & 3)}"})

    def dfr0():
        g.salu("s_mov_b32", sL2E, "0x3fb8aa3b")
        g.salu("s_mov_b32", sINV, "0x3c000000")
        g.salu("s_mov_b32", sEPS, "0x3727c5ac")
        g.salu("s_sub_u32", sTBM, sTB, 32768 + 256)
        g.salu("s_sub_u32", sYM, sY0, 1)
        g.salu("s_sub_u32", sXM, sX0, 1)
        g.valu("v_mov_b32", vBIG, "0x7f000000")

    def dfr1():
        mk_srd(sXF, 4, 8388608)
        mk_srd(sOUT, 16, 8388608)
    deferred = {0: [(dfr0, 32), (lambda: ring_dma_setup(4, 0), 95), (lambda: ring_dma_setup(4, 1), 98), (dfr1, 36)],
                1: [(lambda: ring_dma_setup(5, 0), 105), (lambda: ring_dma_setup(5, 1), 108)],
                2: [(lambda: ring_hw_setup(4), 60), (lambda: ring_hw_setup(5), 75)]}
    if not cfg.get("defer", 1):
        for k_ in range(3):
            for f in deferred[k_]:
                f[0]()
        deferred = {}
    stamp("setup")
    for ev in cfg.get("issue_b", ["T1", "WARM", "T2" if cfg.get("order", [0, 1, 4, 2, 3, 5])[2] == 2 else "R4"]):
        do_issue(ev)
    stamp("issued")

    state = {"epoch": 0, "nread": 0}
    Q = []
    qpos = {"cur": 0, "pf": 0}
    reads_emitted = []

    def prefetch(depth=NB - 1):
        while qpos["pf"] < len(Q):
            it = Q[qpos["pf"]]
            if it.bsrc is None:
                if it.fn is not None and not it.emitted:
                    pass
                qpos["pf"] += 1
                continue
            ep = it.epoch() if callable(it.epoch) else it.epoch
            if ep is None or ep > state["epoch"]:
                break
            n = state["nread"]
            if n >= NB and not reads_emitted[n - NB].emitted:
                break
            ahead = sum(1 for x in reads_emitted[-NB:] if not x.emitted)
            if ahead >= depth:
                break
            it.buf = vBuf[n % NB]
            it.btok = g.ds_read(it.buf, it.bsrc[0], it.bsrc[1])
            reads_emitted.append(it)
            state["nread"] += 1
            qpos["pf"] += 1

    def btoks(it):
        toks = [it.btok]
        if cfg.get("pairwait", 1) and it.btok.idx >= g.done["lg"]:
            k = qpos["cur"] + 1
            if k < len(Q) and Q[k].btok is not None and not Q[k].emitted:
                if g.issued["lg"] - 1 - Q[k].btok.idx >= cfg.get("pairmin", 2):
                    toks.append(Q[k].btok)
        return toks

    def run(items, fillers, min_budget=12, spread=True):
        nm = sum(len(it.mf) for it in items)
        tot = sum(f[1] for f in fillers)
        per = max(min_budget, tot / nm if (nm and spread) else 0)
        fi = 0
        credit = 0
        tm = 0
        for it in items:
            assert Q[qpos["cur"]] is it
            if it.fn is not None:
                it.fn()
                it.emitted = True
                qpos["cur"] += 1
                continue
            prefetch()
            if it.btok is None:
                raise RuntimeError("B read not issued (epoch?)")
            pre_ = it.pre() if it.pre else []
            assert all(x is not None for x in pre_), "W not pumped"
            g.need(*btoks(it), *pre_)
            for k, (D, Aop, C) in enumerate(it.mf):
                g.mfma(D, Aop, it.buf, C)
                tm += 32
                if k == len(it.mf) - 1:
                    it.emitted = True
                    prefetch()
                credit = min(credit + per, 2 * per)
                while fi < len(fillers) and credit > 0:
                    f = fillers[fi]
                    if len(f) > 2 and f[2] > tm:
                        break
                    f[0]()
                    credit -= f[1]
                    fi += 1
            qpos["cur"] += 1
        while fi < len(fillers):
            fillers[fi][0]()
            fi += 1

    pending = []

    def sync(*toks):
        g.need(*toks, *pending)
        pending.clear()
        g.barrier()
        state["epoch"] += 1
        if state["epoch"] == cfg.get("delay_at"):
            g.raw(f"  s_mov_b32 s3, {cfg.get('delay_n', 17)}")
            g.raw("L_dly:")
            g.raw("  s_nop 13")
            g.raw("  s_sub_u32 s3, s3, 1")
            g.raw("  s_cmp_lg_u32 s3, 0")
            g.raw("  s_cbranch_scc1 L_dly")
            g.pos += 16
        if state["epoch"] in cfg.get("skew", []):
            n_ = state["epoch"]
            g.raw(f"  s_mov_b32 s3, s52")
            g.raw(f"L_sk{n_}:")
            g.raw(f"  s_cmp_eq_u32 s3, 0")
            g.raw(f"  s_cbranch_scc1 L_skd{n_}")
            for _ in range(cfg.get("skewn", 0)):
                g.raw("  s_nop 0")
            g.raw(f"  s_sub_u32 s3, s3, 1")
            g.raw(f"  s_branch L_sk{n_}")
            g.raw(f"L_skd{n_}:")
            g.pos += 3

    z1tr = {}

    def z1_items(t, acc, epoch):
        its = []
        for s in range(8):
            C = 0 if s == 0 else acc
            its.append(Item([(acc, vWZ[s], C)], bsrc=(vCs[s], cslot(t)), epoch=epoch, pre=(lambda s=s: [z1tr[s]])))
        for s in range(2):
            its.append(Item([(acc, vID[s], acc)], bsrc=(vXa[s], xslot(t)), epoch=epoch))
        return its

    def stats_ops(acc, buf):
        s1, s2 = vT[0], vT[1]
        ops = []
        ops.append((lambda: g.valu("v_add_f32", s1, acc[0], acc[1]), 4))
        ops.append((lambda: g.valu("v_mul_f32", s2, acc[0], acc[0]), 4))
        ops.append((lambda: g.valu("v_fmac_f32", s2, acc[1], acc[1]), 4))
        for i in range(2, 16):
            ops.append((lambda i=i: g.valu("v_add_f32", s1, s1, acc[i]), 4))
            ops.append((lambda i=i: g.valu("v_fmac_f32", s2, acc[i], acc[i]), 4))
        ops.append((lambda: g.permlane32_swap(s1, s2), 8))
        ops.append((lambda: g.valu("v_add_f32", s1, s1, s2), 4))
        ops.append((lambda: pending.append(g.ds_write(vSW, s1, buf * 1024)), 4))
        return ops

    def norm_ops(acc, buf, hw, hoff):
        st = vLN[0:8]
        y = vLN[8:16]
        e = vLN[16:24]
        pk = vLN[24:28]
        a_, b_, m_, v_ = vT[2], vT[3], vT[4], vT[5]
        tk = {}
        ops = []

        def rd():
            tk[0] = g.ds_read(st[0:4], vSR, buf * 1024)
            tk[1] = g.ds_read(st[4:8], vSR, buf * 1024 + 512)
        ops.append((rd, 24))

        def red():
            g.need(tk[0], tk[1])
            g.valu("v_add_f32", st[0], st[0], st[1])
            g.valu("v_add_f32", st[4], st[4], st[5])
            g.valu("v_add_f32", st[2], st[2], st[3])
            g.valu("v_add_f32", st[6], st[6], st[7])
            g.valu("v_add_f32", st[0], st[0], st[2])
            g.valu("v_add_f32", st[4], st[4], st[6])
        ops.append((red, 28))

        def fin():
            g.valu("v_mul_f32", m_, sINV, st[0])
            g.valu("v_mul_f32", v_, sINV, st[4])
            g.valu("v_fma_f32", v_, "-" + str(m_), m_, v_)
            g.valu("v_max_f32", v_, 0, v_)
            g.valu("v_add_f32", v_, sEPS, v_)
            g.valu("v_rsq_f32", v_, v_)
            g.valu("v_mul_f32", a_, sL2E, v_)
            g.valu("v_mul_f32", b_, m_, a_)
        ops.append((fin, 40))
        for h in range(2):
            for i in range(8):
                ops.append((lambda i=i, h=h: g.valu("v_fma_f32", y[i], acc[8 * h + i], a_, "-" + str(b_)), 5))
            for i in range(8):
                ops.append((lambda i=i: g.valu("v_exp_f32", e[i], "-" + str(y[i])), 8))
            for i in range(8):
                ops.append((lambda i=i: g.valu("v_fma_f32", e[i], e[i], sL2E, sL2E), 5))
            for i in range(8):
                ops.append((lambda i=i: g.valu("v_rcp_f32", e[i], e[i]), 8))
            for i in range(8):
                ops.append((lambda i=i: g.valu("v_mul_f32", y[i], y[i], e[i]), 4))
            for i in range(4):
                ops.append((lambda i=i: g.valu("v_cvt_pk_bf16_f32", pk[i], y[2 * i], y[2 * i + 1]), 5))
            ops.append((lambda h=h: pending.append(g.ds_write(hw, pk, hoff + 32 * h)), 12))
        return ops

    def pk(op, d, *srcs, mods=""):
        w = d.regs()
        r = set()
        for x in srcs:
            r |= x.regs()
        g._emit(f"{op} {d}, " + ", ".join(str(x) for x in srcs) + mods, "valu", w, r, cost=5)

    def stats_pk_ops(acc, buf):
        S1, S2 = V(24, 2), V(26, 2)
        ops = [(lambda: pk("v_pk_add_f32", S1, acc[0:2], acc[2:4]), 5),
               (lambda: pk("v_pk_mul_f32", S2, acc[0:2], acc[0:2]), 5),
               (lambda: pk("v_pk_fma_f32", S2, acc[2:4], acc[2:4], S2), 5)]
        for i in range(2, 8):
            ops.append((lambda i=i: pk("v_pk_add_f32", S1, S1, acc[2 * i:2 * i + 2]), 5))
            ops.append((lambda i=i: pk("v_pk_fma_f32", S2, acc[2 * i:2 * i + 2], acc[2 * i:2 * i + 2], S2), 5))

        def fin():
            g.valu("v_add_f32", S1[0], S1[0], S1[1])
            g.valu("v_add_f32", S2[0], S2[0], S2[1])
            g.permlane32_swap(S1[0], S2[0])
            g.valu("v_add_f32", S1[0], S1[0], S2[0])
            pending.append(g.ds_write(vSW, S1[0], buf * 1024))
        return ops, [(fin, 28)]

    def norm_pk_clusters(acc, buf, hw, hoff):
        st = vPK
        y = vLN[0:16]
        e = vLN[16:32]
        po = vPO
        A2, B2 = V(28, 2), V(30, 2)
        a_, nb_, m_, v_ = V(28), V(30), V(29), V(31)
        BC = " op_sel_hi:[1,0,0]"
        tk = {}

        def rd():
            tk[0] = g.ds_read(st[0:4], vSR, buf * 1024)
            tk[1] = g.ds_read(st[4:8], vSR, buf * 1024 + 512)

        def red():
            g.need(tk[0], tk[1])
            g.valu("v_add_f32", st[0], st[0], st[1])
            g.valu("v_add_f32", st[4], st[4], st[5])
            g.valu("v_add_f32", st[2], st[2], st[3])
            g.valu("v_add_f32", st[6], st[6], st[7])
            g.valu("v_add_f32", st[0], st[0], st[2])
            g.valu("v_add_f32", st[4], st[4], st[6])

        def fin1():
            g.valu("v_mul_f32", m_, sINV, st[0])
            g.valu("v_mul_f32", v_, sINV, st[4])
            g.valu("v_fma_f32", v_, "-" + str(m_), m_, v_)
            g.valu("v_max_f32", v_, 0, v_)

        def fin2():
            g.valu("v_add_f32", v_, sEPS, v_)
            g.valu("v_rsq_f32", v_, v_)
            g.valu("v_mul_f32", a_, sL2E, v_)
            g.valu("v_mul_f32", nb_, "-" + str(m_), a_)
        head = [(red, 28), (fin1, 18), (fin2, 24)]
        P1 = [(lambda i=i: pk("v_pk_fma_f32", y[2 * i:2 * i + 2], acc[2 * i:2 * i + 2], A2, B2, mods=BC), 5) for i in range(8)]
        T1 = [(lambda i=i: g.valu("v_exp_f32", e[i], "-" + str(y[i])), 8) for i in range(16)]
        P2 = [(lambda i=i: pk("v_pk_fma_f32", e[2 * i:2 * i + 2], e[2 * i:2 * i + 2], S(62, 2), S(62, 2), mods=BC), 5) for i in range(8)]
        T2 = [(lambda i=i: g.valu("v_rcp_f32", e[i], e[i]), 8) for i in range(16)]
        P3 = [(lambda i=i: pk("v_pk_mul_f32", y[2 * i:2 * i + 2], y[2 * i:2 * i + 2], e[2 * i:2 * i + 2]), 5) for i in range(8)]
        C = []
        for h in range(2):
            for i in range(4):
                C.append((lambda i=i, h=h: g.valu("v_cvt_pk_bf16_f32", po[4 * h + i], y[8 * h + 2 * i], y[8 * h + 2 * i + 1]), 5))
            C.append((lambda h=h: pending.append(g.ds_write(hw, po[4 * h:4 * h + 4], hoff + 32 * h)), 12))
        return rd, head, P1, T1, P2, T2, P3, C

    class Feeder:
        def __init__(self, items):
            self.items = items
            self.i = 0
            self.k = 0
            self.count = 0

        def left(self):
            return self.i < len(self.items)

        def one(self):
            it = self.items[self.i]
            if self.k == 0:
                assert Q[qpos["cur"]] is it
                prefetch()
                assert it.btok is not None
                pre_ = it.pre() if it.pre else []
                assert all(x is not None for x in pre_), "W not pumped"
                g.need(*btoks(it), *pre_)
            D, Aop, C = it.mf[self.k]
            g.mfma(D, Aop, it.buf, C)
            self.count += 1
            self.k += 1
            if self.k == len(it.mf):
                it.emitted = True
                qpos["cur"] += 1
                self.i += 1
                self.k = 0
                prefetch()

    def host(fd, ops, pitch=22, guard=30):
        rem = sum(o[1] for o in ops)
        since = pitch
        for o in ops:
            if fd.left() and since >= pitch and rem >= guard:
                fd.one()
                since = 0
            o[0]()
            since += o[1]
            rem -= o[1]

    wp = {"tr": 0, "iss": 0}

    def w_issue_ops(n, tmin=None):
        ops = []
        tt = ((tmin,) if tmin is not None else ())
        for _ in range(n):
            k = wp["iss"]
            if k >= NG:
                break
            assert k - NGS < wp["tr"], "ring overflow"

            def head(k=k):
                if k >= NGS:
                    assert wtr[3 * (k - NGS) + 2] is not None
                    g.need(wtr[3 * (k - NGS) + 2])
                g.salu("s_add_u32", "m0", sRING, (k % NGS) * 3072)
                g.salu("s_mov_b32", sWO, wunit_src(3 * k)[1])
            ops.append((head, 14) + tt)
            for i in range(3):
                f = 3 * k + i
                if f >= NW:
                    break

                def dm(f=f, i=i, k=k):
                    srd, _ = wunit_src(f)
                    assert mstate["m0"] == ("w", k), "m0 clobbered inside a W group"
                    vo = vWD[i] if f < 72 else vWZ2[i]
                    wdma[f] = g.dma(vo, srd, sWO, off=1024 * i, flags=FW)
                    if f == min(3 * k + 2, NW - 1) and k == cfg.get("gX", 22) - 1:
                        assert state["epoch"] >= XF_EPOCH, "xf issued too early (slots still in use)"
                        for j in range(4):
                            xf_ops(j)[0][0]()
                ops.append((dm, 20) + tt)
            ops[-(min(3, NW - 3 * k)) - 1] = ((lambda head=head, k=k: (head(), mstate.__setitem__("m0", ("w", k)))), 14) + tt
            wp["iss"] += 1
        return ops

    def w_tr_ops(n, tmin=None):
        ops = []
        tt = ((tmin,) if tmin is not None else ())
        for _ in range(n):
            k = wp["tr"]
            if k >= wp["iss"]:
                break
            fs = [f for f in range(3 * k, 3 * k + 3) if f < NW]
            for i, f in enumerate(fs):
                def tr(f=f, i=i, k=k, last=fs[-1]):
                    if i == 0:
                        g.need(wdma[last])
                    d = wunit_dst(f)
                    o = (k % NGS) * 3072 + 1024 * i
                    g.ds_tr(d[0:2], vTR, o)
                    wtr[f] = g.ds_tr(d[2:4], vTR, o + 256)
                ops.append((tr, 16) + tt)
            wp["tr"] += 1
        return ops

    def pump_ops(n, lag=1, tmin=None):
        ops = []
        for _ in range(n):
            if wp["tr"] >= NG:
                break
            ops += w_tr_ops(1, tmin)
            while wp["iss"] < NG and wp["iss"] - NGS <= wp["tr"] - 1 - lag:
                ops += w_issue_ops(1, tmin)
        return ops

    def conv_item(p, dj, s, epoch):
        mf, fs = [], []
        for di in range(3):
            j = p - di
            if 0 <= j <= 3:
                f = widx[(di, dj, s)]
                fs.append(f)
                mf.append((vAcc[j], wreg(f), vAcc[j]))
        return Item(mf, bsrc=(vB, p * RP + dj * PP + 32 * s), epoch=epoch, pre=(lambda fs=fs: [wtr[f] for f in fs]))

    xftok = {}

    def xf_ops(j):
        def f():
            g.salu("s_add_u32", "m0", sCDMA, xfbuf(j))
            mstate["m0"] = None
            xftok[j] = [g.dma(vC0, sXF, sT[j], flags=FX), g.dma(vC1, sXF, sT[j], off=1024, flags=FX)]
        return [(f, 24)]

    def z2_pre_ops(j, vPK=vPK):
        ops = []
        for h in range(2):
            for i in range(4):
                ops.append((lambda i=i, h=h: g.valu("v_cvt_pk_bf16_f32", vPK[4 * h + i], vAcc[j][8 * h + 2 * i],
                                                    vAcc[j][8 * h + 2 * i + 1]), 5))
            ops.append((lambda h=h: pending.append(g.ds_write(vXa[h], vPK[4 * h:4 * h + 4], ebuf(j))), 12))
        return ops

    def z2_items(j, epoch, vAcc2=vAcc2):
        its = []
        for s in range(8):
            C = 0 if s == 0 else vAcc2
            its.append(Item([(vAcc2, vWZ[s], C)], bsrc=(vCs[s], ebuf(j)), epoch=epoch, pre=(lambda s=s: [wtr[72 + s]])))
        for s in range(2):
            its.append(Item([(vAcc2, vID[s], vAcc2)], bsrc=(vXa[s], xfbuf(j)), epoch=epoch))
        return its

    def z2_post_ops(j, vAcc2=vAcc2, vPO=vPO):
        ops = []
        for h in range(2):
            for i in range(4):
                ops.append((lambda i=i, h=h: g.valu("v_cvt_pk_bf16_f32", vPO[4 * h + i], vAcc2[8 * h + 2 * i],
                                                    vAcc2[8 * h + 2 * i + 1]), 5))
            ops.append((lambda h=h: pending.append(g.ds_write(vXa[h], vPO[4 * h:4 * h + 4], xfbuf(j))), 12))
        return ops

    def out_ops(j, vOS=vOS):
        tk = {}
        ops = []

        def rd():
            tk[0] = g.ds_read(vOS[0:4], vLIN, xfbuf(j))
            tk[1] = g.ds_read(vOS[4:8], vLIN, xfbuf(j) + 1024)
        ops.append((rd, 24))

        def st0():
            g.need(tk[0])
            g.bstore(vOS[0:4], vC0, sOUT, sT[j], flags=FS)

        def st1():
            g.need(tk[1])
            g.bstore(vOS[4:8], vC1, sOUT, sT[j], off=1024, flags=FS)
        ops.append((lambda: None, 24))
        ops.append((st0, 12))
        ops.append((st1, 12))
        return ops

    accs = {0: vAcc[0], 1: vAcc[1], 2: vAcc[2], 3: vAcc[3], 4: vAcc2, 5: vAcc3}
    hws = {0: (vHW, 0), 1: (vHW, RP), 2: (vHW, 2 * RP), 3: (vHW, 3 * RP), 4: (vHWA, 0), 5: (vHWB, 0)}
    ES = cfg.get("early_s", NS // 3)
    dj0 = DJ[0]
    done_groups = set()

    def groups(ps, djs, ss, epoch):
        out = []
        for p in ps:
            for dj in djs:
                for s in ss:
                    if (p, dj, s) in done_groups:
                        continue
                    done_groups.add((p, dj, s))
                    out.append(conv_item(p, dj, s, epoch))
        return out

    ORDER = cfg.get("order", [0, 1, 4, 2, 3, 5])
    stepof = {t: k for k, t in enumerate(ORDER)}
    WBATCH = cfg.get("wbatch", NGS)
    EARLY = cfg.get("early", [0, 0, 0, 16, 32, 48])
    seq = [(dj, s) for dj in DJ for s in range(8)]

    def tiles_for(p, dj):
        need = set()
        for r in (p, p + 4):
            if r == 0:
                need |= {4, 5} if dj > 0 else {4}
            elif r == 9:
                need.add(5)
            else:
                need.add((r - 1) % 4)
                if dj != 1:
                    need.add(4)
        return need

    def first_step(p, dj):
        k = max(stepof[t] + 2 for t in tiles_for(p, dj))
        for di in range(3):
            j = p - di
            if 0 <= j <= 3:
                k = max(k, stepof[j] + 2)
        return k

    def vis_epoch(p, dj):
        return max(stepof[t] + 3 for t in tiles_for(p, dj))

    def issue_tile(t):
        if t < 4:
            issue_T(t)
        else:
            issue_R(t)
    GPS = cfg.get("gps", [0, 3, 3, 3, 4, 5])
    ROLL = cfg.get("roll", 4)
    NLEAD = cfg.get("nlead", 3)
    plan = []
    have_prev = 0
    for k in range(6):
        t = ORDER[k]
        have0 = wp["tr"]
        acts = []
        if k >= 1 and k + NSLOT - 1 <= 5:
            acts = [(lambda k=k, i=i: act_piece(ORDER[k + NSLOT - 1], i), 24) for i in range(4)]
        if k == 0:
            for ev in cfg.get("issue_c", ["T3", "WARM"]):
                if ev == "WARM":
                    acts = acts + [(issue_warm, 80)]
                else:
                    acts = acts + [(lambda ev=ev, i=i: act_piece(int(ev[1]), i), 24) for i in range(4)]
        acts = acts + deferred.get(k, [])
        wb = []
        tr0 = []
        if k <= ROLL:
            tr0 = w_tr_ops(min(wp["iss"], 21) - wp["tr"])
        have = wp["tr"]
        if k < ROLL:
            for _ in range(GPS[k]):
                if wp["iss"] - wp["tr"] < NGS:
                    wb.append(w_issue_ops(1))
        else:
            if k == ROLL:
                wb.append(w_issue_ops(NGS - 1))
            for _ in range(GPS[k]):
                b = []
                if wp["tr"] < min(21, wp["iss"]) and wp["iss"] - wp["tr"] >= NGS - 1:
                    b += w_tr_ops(1)
                if wp["iss"] - wp["tr"] < NGS:
                    b += w_issue_ops(1)
                wb.append(b)
        z = z1_items(t, accs[t], k + 1)
        lead, rest = [], []
        budget = EARLY[k]
        for p in (1, 2, 3, 4):
            for gi, (dj, s_) in enumerate(seq[:have]):
                if first_step(p, dj) <= k and (p, dj, s_) not in done_groups and budget > 0:
                    it = groups([p], [dj], [s_], vis_epoch(p, dj))
                    budget -= len(it[0].mf)
                    if len(lead) < NLEAD and vis_epoch(p, dj) <= k and gi < have0:
                        lead += it
                    else:
                        rest += it
        Q.extend(lead + z + rest)
        plan.append((t, acts, wb, tr0, lead, z, rest))

    for k in range(6):
        t, acts, wb, tr0, lead, z, rest = plan[k]
        if k == 0:
            sync(*z1dma, *atok[t])
            for s in range(8):
                g.ds_tr(vWZ[s][0:2], vTZ, s * 4096)
                z1tr[s] = g.ds_tr(vWZ[s][2:4], vTZ, s * 4096 + 1024)
            pending.append(z1tr[7])
        else:
            sync(*atok[t])
        stamp(f"step{k}")
        if cfg.get("pk") and k >= 1:
            tp = ORDER[k - 1]
            rd, nhead, P1, T1, P2, T2, P3, Cc = norm_pk_clusters(accs[tp], (k - 1) & 1, *hws[tp])
            SP, Sfin = stats_pk_ops(accs[t], k & 1)
            rd()
            prefetch()
            for o in tr0:
                o[0]()
            if k < ROLL:
                vmo = [o for b in wb for o in b] + acts
            else:
                vmo = list(acts) + [o for b in wb for o in b]
            fd = Feeder(lead + z + rest)
            nz = sum(len(i.mf) for i in lead) + 10
            nv = len(vmo)
            c1 = cfg.get("pkv1", 0.5)
            v1 = vmo[:int(nv * c1)]
            v2 = vmo[int(nv * c1):]
            host(fd, v1[:3] + nhead + v1[3:])
            for o in P1: o[0]()
            host(fd, T1)
            while fd.count < nz:
                fd.one()
            host(fd, v2[:len(v2) // 2] or [(lambda: None, 30)], guard=10 ** 9 if False else 30)
            for o in P2: o[0]()
            for o in SP: o[0]()
            host(fd, Sfin + T2)
            for o in P3: o[0]()
            tail_ops = Cc + v2[len(v2) // 2:]
            host(fd, tail_ops, guard=0)
            while fd.left():
                fd.one()
            continue
        tp = ORDER[k - 1] if k else None
        nrm = norm_ops(accs[tp], (k - 1) & 1, *hws[tp]) if k else []
        st = stats_ops(accs[t], k & 1)
        if nrm:
            nrm[0][0]()
            nrm = nrm[1:]
        prefetch()
        for o in tr0:
            o[0]()
        pre_roll = k < ROLL
        if pre_roll:
            head = [o for b in wb for o in b] + acts
            wbs = []
        else:
            head = list(acts)
            wbs = list(wb)
        tail = []
        if wbs:
            tail = wbs.pop()
        elif len(head) > 6:
            pass
        ncov = cfg.get("ncov", 3)
        if not lead and not tr0:
            for o in head[:ncov]:
                o[0]()
            head = head[ncov:]
        body = []
        tot = sum(f[1] for f in nrm) or 1
        marks = [((i + 0.3) / max(1, len(wbs)), b) for i, b in enumerate(wbs)]
        acc_c = 0
        mi = 0
        hi = 0
        for idx, op in enumerate(nrm):
            if hi < len(head) and idx % 2 == 1:
                body.append(head[hi]); hi += 1
            while mi < len(marks) and marks[mi][0] * tot <= acc_c:
                body += marks[mi][1]; mi += 1
            body.append(op)
            acc_c += op[1]
        body += head[hi:]
        for m in marks[mi:]:
            body += m[1]
        items = lead + z + rest
        nm = sum(len(i.mf) for i in items)
        nz = sum(len(i.mf) for i in lead) + 10
        total = sum(f[1] for f in body + st + tail)
        per = max(24, total / nm) if rest else 24
        cum = 0
        pos = len(body)
        for i, f in enumerate(body):
            if cum >= per * nz + 60:
                pos = i
                break
            cum += f[1]
        st = [(f[0], f[1], 32 * nz) for f in st]
        fill = body[:pos] + st + body[pos:] + tail
        if cfg.get("fine2") == k:
            nf = []
            for i, f in enumerate(fill):
                if i % 10 == 0:
                    nf.append((lambda i=i: stamp(f"f{i}"), 0) + tuple(f[2:]))
                nf.append(f)
            fill = nf
        run(items, fill, min_budget=per, spread=False)

    sync()
    stamp("step6")
    ep6 = state["epoch"]
    PK6 = cfg.get("pk") and cfg.get("pk6", 1)
    if PK6:
        rd, nhead, P1, T1, P2, T2, P3, Cc = norm_pk_clusters(accs[5], 5 & 1, *hws[5])
        tr6 = w_tr_ops(min(wp["iss"], 21) - wp["tr"])
        have6 = wp["tr"]
        vmo = w_issue_ops(NGS - (wp["iss"] - wp["tr"]))
        vmo += pump_ops(cfg.get("pump6", 2))
        assert wp["tr"] <= 21
        rest = []
        budget = cfg.get("early6", 24)
        for p in (1, 2, 3, 4):
            for (dj, s_) in seq[:have6]:
                if (p, dj, s_) not in done_groups and budget > 0:
                    rest += groups([p], [dj], [s_], ep6)
                    budget -= len(rest[-1].mf)
        Q.extend(rest)
        rd()
        for o in tr6:
            o[0]()
        prefetch()
        fd = Feeder(rest)
        h2 = len(vmo) // 2
        host(fd, vmo[:3] + nhead + vmo[3:h2])
        for o in P1: o[0]()
        host(fd, T1)
        for o in P2: o[0]()
        host(fd, T2)
        for o in P3: o[0]()
        host(fd, Cc + vmo[h2:], guard=0)
        while fd.left():
            fd.one()
        sync()
        stamp("step7")
        ep6 = state["epoch"]
    dW = cfg.get("dW", 240)
    tRB = 0 if PK6 else cfg.get("tRB", 900)
    have = wp["tr"]
    gX = cfg.get("gX", 22)
    dX = cfg.get("dX", 2200)

    def t_arr(k):
        if k < have:
            return 0
        tt = (k - have + 1) * dW
        if k >= gX:
            tt += dX
        return tt
    avail = {}
    for k, key in enumerate(seq):
        avail[key] = 0 if k < have else max(t_arr(k) + 120, tRB + 180 if k >= 21 else 0)
    prio = cfg.get("prio", [1, 2, 0, 5, 3, 4])
    todo = [(p, dj, s) for p in prio for (dj, s) in seq if (p, dj, s) not in done_groups]
    needM = {j: {(p, dj, s) for p in (j, j + 1, j + 2) for (dj, s) in seq} - done_groups for j in range(4)}
    tW2 = max(t_arr(26) + 120, t_arr(gX - NGS) + dX + 200, tRB + 180)
    events = []
    t = 0
    rb_done = bool(PK6)
    z2_ready = {}
    z2_started = set()
    zorder = []
    z2_last = -10**9
    z2_wait = {}
    NZ = 2 if cfg.get("joint", 1) else 4
    while todo or len(z2_started) < NZ:
        if not rb_done and t >= tRB:
            events.append(("rb", t))
            rb_done = True
        cand = None
        for j in range(NZ):
            if j in z2_ready and j not in z2_started and t >= z2_ready[j] and t >= tW2 and t >= z2_last + 320 + 128:
                cand = ("z2", j)
                break
        if cand is None:
            for key in todo:
                p, dj, s = key
                if avail[(dj, s)] <= t and (rb_done or p not in (0, 5)):
                    cand = ("g", key)
                    break
        if cand is None:
            t += 32
            if not todo and not rb_done:
                events.append(("rb", t)); rb_done = True
            continue
        events.append(cand + (t,))
        if cand[0] == "z2":
            z2_started.add(cand[1])
            z2_last = t
            t += 320
            for j in list(z2_wait):
                if z2_wait[j] and (j - 1) in z2_started:
                    z2_wait[j] = False
                    z2_ready[j] = t + cfg.get("z2lag", 192)
                    events.append(("z2pre", j, t))
        else:
            key = cand[1]
            todo.remove(key)
            p = key[0]
            t += 32 * len([di for di in range(3) if 0 <= p - di <= 3])
            for j in range(4):
                needM[j].discard(key)
                if not needM[j] and j not in z2_ready and j not in z2_wait and j < NZ:
                    z2_wait[j] = True
            for j in list(z2_wait):
                if z2_wait[j] and (NSLOT == 4 or j < 2 or (j - 1) in z2_started):
                    z2_wait[j] = False
                    z2_ready[j] = t + cfg.get("z2lag", 192)
                    events.append(("z2pre", j, t))
    sys.stderr.write(f"modelled main phase {t} cycles; z2 starts {[e[2] for e in events if e[0]=='z2']}\n")

    items = []
    fillers = []
    epochs = {}
    if not PK6:
        fillers += [(f[0], f[1], 0) for f in norm_ops(accs[5], 5 & 1, *hws[5])]
    pump_timed = w_issue_ops(NGS - (wp["iss"] - wp["tr"]), tmin=0)
    for k in range(have, NG):
        tm_ = t_arr(k) - 60
        if k >= 21:
            tm_ = max(tm_, tRB)
        pump_timed += pump_ops(1, tmin=tm_)
    xf_timed = []
    timed = []
    for f in pump_timed + xf_timed:
        timed.append(f)
    last_post = None
    for ev in events:
        if ev[0] == "g":
            p, dj, s = ev[1]
            ep = ep6 if (PK6 or p not in (0, 5)) else (lambda: epochs.get("rb"))
            items.append(conv_item(p, dj, s, ep))
        elif ev[0] == "rb":
            def f_rb():
                sync()
                epochs["rb"] = state["epoch"]
                stamp("step7")
            items.append(Item([], fn=f_rb))
            items[-1].kind = ("rb", ev[1])
        elif ev[0] == "z2pre":
            j = ev[1]
            timed += [(f[0], f[1], ev[2]) for f in z2_pre_ops(j)]
        elif ev[0] == "z2":
            j = ev[1]

            def f_z(j=j):
                sync(*xftok[j])
                epochs[("z", j)] = state["epoch"]
                stamp(f"z2_{j}")
            it = Item([], fn=f_z)
            it.kind = ("z2sync", ev[2], j)
            items.append(it)
            items += z2_items(j, (lambda j=j: epochs.get(("z", j))))
            timed += [(f[0], f[1], ev[2] + 320 + 64) for f in z2_post_ops(j)]
            if j > 0:
                timed += [(f[0], f[1], ev[2] + 32) for f in out_ops(zorder[-1])]
            zorder.append(j)
    timed.sort(key=lambda f: f[2])
    allf = fillers + timed
    Q.extend(items)

    fi = 0
    tm = 0
    credit = 0
    per = cfg.get("per", 16)
    for it in items:
        assert Q[qpos["cur"]] is it
        if it.fn is not None:
            tl = it.kind[1]
            while fi < len(allf) and allf[fi][2] <= tl:
                allf[fi][0]()
                fi += 1
            it.fn()
            it.emitted = True
            qpos["cur"] += 1
            continue
        prefetch()
        if it.btok is None:
            raise RuntimeError("B read not issued (epoch?)")
        pre = it.pre() if it.pre else []
        while any(x is None for x in pre):
            allf[fi][0]()
            fi += 1
            pre = it.pre()
        g.need(*btoks(it), *pre)
        for k, (D, Aop, C) in enumerate(it.mf):
            g.mfma(D, Aop, it.buf, C)
            tm += 32
            c0 = g.cost
            if k == len(it.mf) - 1:
                it.emitted = True
                prefetch()
            credit = min(credit, 0) + cfg.get("gap", 20) - (g.cost - c0)
            while fi < len(allf) and credit > 0 and allf[fi][2] <= tm:
                allf[fi][0]()
                credit -= allf[fi][1]
                fi += 1
        qpos["cur"] += 1
    while fi < len(allf):
        allf[fi][0]()
        fi += 1
    if NZ == 2:
        vS3 = [V(224 + i) for i in range(10)]
        p2 = z2_pre_ops(2, vPK)
        for f in p2:
            f[0]()
        for i in range(8):
            g.valu("v_add_u32", vS3[i], WB, vCs[i])
        for h in range(2):
            g.valu("v_add_u32", vS3[8 + h], WB, vXa[h])
            for i in range(4):
                g.valu("v_cvt_pk_bf16_f32", vOS[4 * h + i], vAcc[3][8 * h + 2 * i], vAcc[3][8 * h + 2 * i + 1])
            pending.append(g.ds_write(vS3[8 + h], vOS[4 * h:4 * h + 4], 0))
        sync(*xftok[2], *xftok[3])
        stamp("z2_2")
        e_ = state["epoch"]
        za, zb = z2_items(2, e_, vAcc2), z2_items(3, e_, vAcc3)
        for i in range(8):
            zb[i].bsrc = (vS3[i], 0)
        zz = za[:5] + [x for pr in zip(za[5:], zb[:5]) for x in pr] + zb[5:]
        Q.extend(zz)
        run(zz, out_ops(1, vPK) + [(f[0], f[1], 32 * 17) for f in z2_post_ops(2, vAcc2, vPO)], min_budget=24, spread=False)
        for f in z2_post_ops(3, vAcc3, vOS):
            f[0]()
        sync()
        stamp("z2_3")
        o2, o3 = out_ops(2, vAcc2[0:8]), out_ops(3, vAcc2[8:16])
        o2[0][0](); o3[0][0]()
        for f in o2[2:] + o3[2:]:
            f[0]()
    else:
        sync()
        for f in out_ops(zorder[-1]):
            f[0]()
    stamp("end")
    if STAMPS:
        g.raw("  s_waitcnt vmcnt(0)")
        g.raw("  s_memtime s[74:75]")
        g.raw("  s_memrealtime s[98:99]")
        g.raw("  s_waitcnt lgkmcnt(0)")
        n = len(stamps)
        g.raw(f"  s_mov_b32 s{76 + n}, s74")
        n += 1
        stamps.append("drained")
        g.raw("  s_lshl_b32 s3, s2, 2")
        g.raw("  s_add_u32 s3, s3, s52")
        g.raw("  s_lshl_b32 s3, s3, 7")
        g.raw("  v_mov_b32 v0, 0")
        for i in range(n):
            g.raw(f"  v_mov_b32 v1, s{76 + i}")
            g.raw(f"  buffer_store_dword v1, v0, s[48:51], s3 offen offset:{4 * i}")
        g.raw("  v_mov_b32 v1, s96")
        g.raw(f"  buffer_store_dword v1, v0, s[48:51], s3 offen offset:{4 * 30}")
        g.raw("  v_mov_b32 v1, s98")
        g.raw(f"  buffer_store_dword v1, v0, s[48:51], s3 offen offset:{4 * 31}")
    g.raw("L_end:")
    g.raw("  s_endpgm")
    tail = """.section .rodata,"a"
.p2align 6
.amdhsa_kernel standalone__controlnet__diffusion_kernel
  .amdhsa_next_free_vgpr 512
  .amdhsa_next_free_sgpr 102
  .amdhsa_accum_offset 256
  .amdhsa_group_segment_fixed_size 0
  .amdhsa_kernarg_size 72
  .amdhsa_user_sgpr_count 2
  .amdhsa_user_sgpr_kernarg_segment_ptr 1
  .amdhsa_system_sgpr_workgroup_id_x 1
.end_amdhsa_kernel
"""
    sys.stderr.write(f"est issue cycles {g.cost}, nops {g.nops}, lines {len(g.lines)}, NS {NS}\n")
    if STAMPS:
        open(cfg.get("_out", "x") + ".names", "w").write(",".join(stamps))
    return "\n".join(hdr) + "\n" + g.text() + tail


if __name__ == "__main__":
    import json
    out = sys.argv[1]
    cfg = json.loads(sys.argv[2]) if len(sys.argv) > 2 else {}
    cfg["_out"] = out
    open(out, "w").write(build(cfg))
```

```python
import sys
from dsl import *

RP = 4928
PP = 272
import os
NSLOT = int(os.environ.get('NSLOT', 4))
AB = 0
HB = AB + NSLOT * 16384
SB = HB + 10 * RP
WB = SB + 2048
NS = (163840 - WB) // 12288 * 3
LDS_BYTES = WB + NS * 4096
assert LDS_BYTES <= 163840
SLOT = {}
def cslot(t): return AB + SLOT[t] * 16384
def xslot(t): return AB + SLOT[t] * 16384 + 8192
if NSLOT == 3:
    def xfbuf(j): return AB + j * 8192
    def ebuf(j): return AB + 2 * 16384 + (j & 1) * 8192
    XF_EPOCH = 6
    DUMMY = AB + 2 * 16384
else:
    def xfbuf(j): return AB + 2 * 16384 + j * 8192
    def ebuf(j): return AB + j * 8192
    XF_EPOCH = 5
    DUMMY = AB

sXF, sX, sC, sOUT, sWZ1, sWZ2, sWC, sWS = (S(20, 4), S(24, 4), S(28, 4), S(32, 4), S(36, 4), S(40, 4), S(44, 4), S(48, 4))
sW = S(52); sTB = S(53); sRING = S(54); sZ1ST = S(55); sCDMA = S(56); s64w = S(57)
sYM = S(58); sXM = S(59); sY0 = S(60); sX0 = S(61); sL2E = S(62); sINV = S(63); sEPS = S(64); sTBM = S(65)
sT = [S(66), S(67), S(68), S(69)]
sTMP = S(70); sTMP2 = S(71); sTMP3 = S(72); sWO = S(73)

vLIN = V(1); vC0 = V(2); vC1 = V(3); vWS = V(4); vTR = V(5); vTZ = V(6); vB = V(7)
vCs = [V(8 + s) for s in range(8)]
vHW = V(16); vHWA = V(17); vHWB = V(18); vSW = V(19); vSR = V(20); vXa = [V(21), V(22)]
vT = [V(23 + i) for i in range(9)]
NB = 6
vBuf = [V(32 + 4 * i, 4) for i in range(NB)]
vID = [V(56, 4), V(60, 4)]
vRG = {4: [V(64), V(65)], 5: [V(66), V(67)]}
vWD = [V(4), V(92), V(93)]
vWZ2 = [V(4), V(94), V(95)]
vPK = V(68, 8)
vPO = V(76, 8)
vOS = V(84, 8)
vAcc3 = V(96, 16)
vAcc2 = V(112, 16)
vAcc = [V(128 + 16 * j, 16) for j in range(4)]
vWZ = [V(192 + 4 * f, 4) for f in range(8)]
vLN = V(224, 32)


def wreg(f):
    return A(4 * f, 4) if f < 64 else V(224 + 4 * (f - 64), 4)


class Item:
    def __init__(self, mf, bsrc=None, epoch=0, pre=None, fn=None):
        self.mf = mf
        self.bsrc = bsrc
        self.epoch = epoch
        self.pre = pre
        self.fn = fn
        self.btok = None
        self.buf = None
        self.emitted = False


def build(cfg):
    g = G()
    hdr = [f"; @launch grid=(256,1,1) block=(256,1,1) lds={LDS_BYTES}",
           '.amdgcn_target "amdgcn-amd-amdhsa--gfx950"', ".text",
           ".globl standalone__controlnet__diffusion_kernel", ".p2align 8",
           ".type standalone__controlnet__diffusion_kernel,@function",
           "standalone__controlnet__diffusion_kernel:"]
    stamps = []
    STAMPS = cfg.get("stamps")

    def stamp(name):
        if not STAMPS:
            return
        if isinstance(STAMPS, list) and name not in STAMPS:
            return
        n = len(stamps)
        assert n < 19
        stamps.append(name)
        sys.stderr.write(f"  stamp {name}: est {g.cost} instrs {len(g.lines)} nops {g.nops}\n")
        g.raw("  s_memtime s[74:75]")
        g.raw("  s_waitcnt lgkmcnt(0)")
        g.done["lg"] = g.issued["lg"]
        g.raw(f"  s_mov_b32 s{76 + n}, s74")
        g.pos += 3

    DJ = cfg.get("dj_order", (1, 0, 2))
    for k_, t_ in enumerate(cfg.get("order", [0, 1, 4, 2, 3, 5])):
        SLOT[t_] = k_ % NSLOT
    FA = cfg.get("fa", " nt"); FX = cfg.get("fx", " nt"); FS = cfg.get("fs", " nt"); FWARM = cfg.get("fwarm", ""); FW = cfg.get("fw", ""); FZ = cfg.get("fz", "")

    g.sop("s_cmp_ge_u32 s2, 256", r={"s2"})
    g.sop("s_cbranch_scc1 L_end")
    g.raw("  s_load_dwordx16 s[4:19], s[0:1], 0")
    if STAMPS:
        g.raw("  s_load_dwordx2 s[48:49], s[0:1], 64")
        g.raw("  s_memrealtime s[96:97]")
    g.pos += 2
    stamp("start")
    L = V(96); I = V(97); HF = V(99); t0 = V(100); t1 = V(101); t2 = V(98); t3 = V(102); vZS = V(103)
    vL16 = V(104)
    g.valu("v_and_b32", L, 63, V(0))
    g.valu("v_lshrrev_b32", t0, 6, V(0))
    g.readfirstlane(sW, t0)
    g.valu("v_and_b32", I, 31, V(0))
    g.valu("v_bfe_u32", HF, V(0), 5, 1)
    if cfg.get("codepf"):
        nl = cfg["codepf"]
        g.raw("  s_getpc_b64 s[90:91]")
        g.raw("L_pc:")
        g.pos += 1
        g.salu("s_lshr_b32", sTMP, "s2", 3)
        g.salu("s_lshl_b32", sTMP, sTMP, 2)
        g.salu("s_add_u32", sTMP, sTMP, sW)
        g.salu("s_mul_i32", sTMP, sTMP, nl * 128)
        g.valu("v_and_b32", t0, nl - 1, V(0))
        g.valu("v_lshlrev_b32", t0, 7, t0)
        g.valu("v_add_u32", t0, sTMP, t0)
        g.valu("v_min_u32", t0, "L_end-L_pc", t0)
        g.valu("v_mov_b32", t1, S(91))
        g._emit(f"v_add_co_u32 {t0}, vcc, s90, {t0}", "valu", t0.regs() | {"vcc"}, t0.regs())
        g._emit(f"v_addc_co_u32 {t1}, vcc, 0, {t1}, vcc", "valu", t1.regs() | {"vcc"}, t1.regs() | {"vcc"})
        g.raw("  global_load_dword a235, v[100:101], off")
        g.pos += 1
        g._tok("vm")
    g.salu("s_and_b32", sTMP, "s2", 7)
    g.salu("s_lshl_b32", sTMP, sTMP, 5)
    g.salu("s_lshr_b32", sTMP2, "s2", 3)
    g.salu("s_add_u32", sTMP, sTMP, sTMP2)
    g.salu("s_lshr_b32", sTMP3, sTMP, 3)
    g.salu("s_lshl_b32", sTB, sTMP3, 18)
    g.salu("s_and_b32", sY0, sTMP3, 15)
    g.salu("s_lshl_b32", sY0, sY0, 3)
    g.salu("s_and_b32", sX0, sTMP, 7)
    g.salu("s_lshl_b32", sTMP3, sX0, 12)
    g.salu("s_lshl_b32", sX0, sX0, 4)
    g.salu("s_add_u32", sTB, sTB, sTMP3)
    g.salu("s_mov_b32", sT[0], sTB)
    for j in range(1, 4):
        g.salu("s_add_u32", sT[j], sTB, j * 32768)
    g.salu("s_lshl_b32", sCDMA, sW, 11)
    g.salu("s_lshl_b32", s64w, sW, 6)
    g.salu("s_lshr_b32", sTMP, sW, 1)
    g.salu("s_lshl_b32", sTMP, sTMP, 17)
    g.salu("s_and_b32", sTMP2, sW, 1)
    g.salu("s_lshl_b32", sTMP2, sTMP2, 3)
    g.valu("v_lshrrev_b32", t3, 4, L)
    g.valu("v_add_u32", t0, sTMP2, t3)
    g.valu("v_and_b32", t1, 15, L)
    g.valu("v_xor_b32", t2, t1, t0)
    g.valu("v_lshlrev_b32", t2, 4, t2)
    g.valu("v_lshl_add_u32", t2, t0, 8, t2)
    g.valu("v_add_u32", vC0, sTMP, t2)
    g.valu("v_add_u32", t0, 4, t0)
    g.valu("v_xor_b32", t2, t1, t0)
    g.valu("v_lshlrev_b32", t2, 4, t2)
    g.valu("v_lshl_add_u32", t2, t0, 8, t2)
    g.valu("v_add_u32", t2, sTMP, t2)
    g.valu("v_subrev_u32", vC1, 1024, t2)
    g.valu("v_bfe_u32", t0, L, 2, 2)
    g.valu("v_xor_b32", t0, t0, t3)
    g.valu("v_lshlrev_b32", t0, 6, t0)
    g.valu("v_lshl_add_u32", t0, t3, 8, t0)
    g.valu("v_and_b32", t1, 3, L)
    g.valu("v_lshl_add_u32", vZS, t1, 4, t0)
    g.valu("v_lshrrev_b32", t0, 2, L)
    g.valu("v_lshlrev_b32", t0, 8, t0)
    g.valu("v_lshl_add_u32", t0, t1, 4, t0)
    g.valu("v_add_u32", vWS, s64w, t0)
    g.valu("v_add_u32", vWD[1], 98304 - 1024, vWS)
    g.valu("v_add_u32", vWD[2], 2 * (98304 - 1024), vWS)
    g.valu("v_add_u32", vWZ2[1], 4096 - 1024, vWS)
    g.valu("v_add_u32", vWZ2[2], 2 * (4096 - 1024), vWS)
    g.valu("v_lshlrev_b32", vL16, 4, L)
    g.salu("s_mul_i32", sTMP3, sW, NS * 1024)
    g.salu("s_add_u32", sRING, sTMP3, WB)
    g.salu("s_lshl_b32", sZ1ST, sW, 13)
    g.raw("  s_waitcnt lgkmcnt(0)")
    g.pos += 1

    def mk_srd(srd, p, n):
        g.salu("s_mov_b32", srd[0], S(p))
        g.salu("s_mov_b32", srd[1], S(p + 1))
        g.salu("s_mov_b32", srd[2], n)
        g.salu("s_mov_b32", srd[3], "0x00020000")
    mk_srd(sC, 8, 8388608)
    mk_srd(sX, 6, 8388608)

    atok = {}
    mstate = {"m0": None}

    def issue_T(j):
        g.salu("s_add_u32", "m0", sCDMA, cslot(j))
        a = g.dma(vC0, sC, sT[j], flags=FA)
        b = g.dma(vC1, sC, sT[j], off=1024, flags=FA)
        g.salu("s_add_u32", "m0", sCDMA, xslot(j))
        c = g.dma(vC0, sX, sT[j], flags=FA)
        d = g.dma(vC1, sX, sT[j], off=1024, flags=FA)
        atok[j] = [a, b, c, d]

    def act_piece(t, i):
        srd, base = ((sC, cslot(t)), (sX, xslot(t)))[i >> 1]
        g.salu("s_add_u32", "m0", sCDMA, base)
        mstate["m0"] = None
        if t < 4:
            tok = g.dma((vC0, vC1)[i & 1], srd, sT[t], off=1024 * (i & 1), flags=FA)
        else:
            tok = g.dma(vRG[t][i & 1], srd, 0, off=1024 * (i & 1), flags=FA)
        atok.setdefault(t, []).append(tok)

    def issue_R(t):
        toks = []
        for srd, base in ((sC, cslot(t)), (sX, xslot(t))):
            g.salu("s_add_u32", "m0", sCDMA, base)
            toks.append(g.dma(vRG[t][0], srd, 0, flags=FA))
            toks.append(g.dma(vRG[t][1], srd, 0, off=1024, flags=FA))
        atok[t] = toks

    worder = []
    for dj in DJ:
        for s in range(8):
            for di in range(3):
                worder.append((di, dj, s))
    widx = {k: f for f, k in enumerate(worder)}
    NW = 80
    wdma = [None] * NW
    wtr = [None] * NW

    def wunit_src(f):
        if f < 72:
            di, dj, s = worder[f]
            return sWC, ((di * 3 + dj) * 128 + 16 * s) * 256
        return sWZ2, (f - 72) * 4096

    def wunit_dst(f):
        return wreg(f) if f < 72 else vWZ[f - 72]

    NG = 27
    NGS = NS // 3

    def issue_WG(k):
        g.salu("s_add_u32", "m0", sRING, (k % NGS) * 3072)
        f0 = 3 * k
        srd, off = wunit_src(f0)
        g.salu("s_mov_b32", sTMP, off)
        for i in range(3):
            f = f0 + i
            if f >= NW:
                break
            vo = vWD[i] if f < 72 else vWZ2[i]
            wdma[f] = g.dma(vo, srd, sTMP, off=1024 * i, flags=FW)

    def tr_WG(k):
        fs = [f for f in range(3 * k, 3 * k + 3) if f < NW]
        g.need(wdma[fs[-1]])
        for i, f in enumerate(fs):
            d = wunit_dst(f)
            o = (k % NGS) * 3072 + 1024 * i
            g.ds_tr(d[0:2], vTR, o)
            wtr[f] = g.ds_tr(d[2:4], vTR, o + 256)

    z1dma = []

    def issue_wz1(hs=(0, 1)):
        for h in hs:
            g.salu("s_add_u32", "m0", sZ1ST, HB + h * 4096)
            g.salu("s_add_u32", sTMP, sZ1ST, h * 4096)
            for m in range(4):
                z1dma.append(g.dma(vZS, sWZ1, sTMP, off=m * 1024, flags=FZ))

    def issue_warm():
        g.salu("s_lshr_b32", sTMP2, "s2", 3)
        g.salu("s_mul_i32", sTMP, sTMP2, 9216)
        g.salu("s_lshl_b32", sTMP3, sW, 10)
        g.salu("s_add_u32", sTMP, sTMP, sTMP3)
        g.bload(A(240, 4), vL16, sWC, sTMP, flags=FWARM)
        g.salu("s_add_u32", sTMP, sTMP, 4096)
        g.bload(A(244, 4), vL16, sWC, sTMP, flags=FWARM)
        g.valu("v_and_b32", t0, 0xf0, vL16)
        g.salu("s_mul_i32", sTMP, sTMP2, 9216)
        g.salu("s_lshl_b32", sTMP3, sW, 8)
        g.salu("s_add_u32", sTMP, sTMP, sTMP3)
        g.salu("s_add_u32", sTMP, sTMP, 8192)
        g.bload(A(248, 4), t0, sWC, sTMP, flags=FWARM)
        g.salu("s_lshl_b32", sTMP, sTMP2, 10)
        g.salu("s_add_u32", sTMP, sTMP, sTMP3)
        g.bload(A(252, 4), t0, sWZ2, sTMP, flags=FWARM)
        if cfg.get("warm_z1", True):
            g.bload(A(236, 4), t0, sWZ1, sTMP, flags=FWARM)

    vBIG = V(105)

    def ring_coords(tile, idx, hr, hc, tmp):
        if tile == 4:
            g.vcmp("v_cmp_gt_u32", 16, idx)
            g.valu("v_lshrrev_b32", hr, 1, idx)
            g.valu("v_add_u32", hr, 1, hr)
            g.valu("v_and_b32", hc, 1, idx)
            g.valu("v_mul_u32_u24", hc, 17, hc)
            g.valu("v_subrev_u32", tmp, 16, idx)
            g.cndmask(hr, 0, hr)
            g.cndmask(hc, tmp, hc)
        else:
            g.vcmp("v_cmp_gt_u32", 18, idx)
            g.valu("v_subrev_u32", tmp, 2, idx)
            g.valu("v_mov_b32", hr, 9)
            g.cndmask(hr, 0, hr)
            g.cndmask(hc, tmp, idx)
            g.vcmp("v_cmp_gt_u32", 20, idx)
            g.valu("v_mov_b32", tmp, 64)
            g.cndmask(hr, tmp, hr)

    hr_, hc_, tmp_, idx_, sw_, d_ = V(106), V(107), V(108), V(109), V(110), V(111)

    def ring_dma_setup(tile, e):
        hr, hc, tmp, idx, sw = hr_, hc_, tmp_, idx_, sw_
        dst = vRG[tile][e]
        g.salu("s_lshl_b32", sTMP2, sW, 3)
        g.salu("s_add_u32", sTMP2, sTMP2, 4 * e)
        g.valu("v_lshrrev_b32", idx, 4, L)
        g.valu("v_add_u32", idx, sTMP2, idx)
        ring_coords(tile, idx, hr, hc, tmp)
        g.valu("v_add_u32", tmp, sYM, hr)
        g.valu("v_add_u32", d_, sXM, hc)
        g.valu("v_max_u32", tmp, tmp, d_)
        if tile == 5:
            g.valu("v_lshlrev_b32", d_, 3, hr)
            g.valu("v_max_u32", tmp, tmp, d_)
        g.vcmp("v_cmp_gt_u32", 128, tmp)
        g.valu("v_lshlrev_b32", dst, 15, hr)
        g.valu("v_lshl_add_u32", dst, hc, 8, dst)
        g.valu("v_add_u32", dst, sTBM, dst)
        g.valu("v_xor_b32", sw, idx, L)
        g.valu("v_and_b32", sw, 15, sw)
        g.valu("v_lshl_add_u32", dst, sw, 4, dst)
        if e == 1:
            g.valu("v_subrev_u32", dst, 1024, dst)
        g.cndmask(dst, vBIG, dst)

    def ring_hw_setup(tile):
        hr, hc, tmp = hr_, hc_, tmp_
        ring_coords(tile, I, hr, hc, tmp)
        hw = vHWA if tile == 4 else vHWB
        if tile == 5:
            g.vcmp("v_cmp_gt_u32", 10, hr)
        g.valu("v_mul_u32_u24", hw, RP, hr)
        g.valu("v_mul_u32_u24", tmp, PP, hc)
        g.valu("v_add3_u32", hw, hw, tmp, s64w)
        g.valu("v_lshl_add_u32", hw, HF, 4, hw)
        g.valu("v_add_u32", hw, HB, hw)
        if tile == 5:
            g.valu("v_mov_b32", tmp, DUMMY)
            g.cndmask(hw, tmp, hw)

    mk_srd(sWZ1, 10, 32768)

    def do_issue(ev):
        if ev[0] == "T":
            issue_T(int(ev[1]))
        elif ev == "R4":
            issue_R(4)
        elif ev == "Z":
            issue_wz1()
        elif ev == "Za":
            issue_wz1((0,))
        elif ev == "Zb":
            issue_wz1((1,))
        elif ev == "WARM":
            issue_warm()
        stamp("i" + ev)
    for ev in cfg.get("issue_a", ["T0", "Z"]):
        do_issue(ev)

    mk_srd(sWC, 14, 294912)
    mk_srd(sWZ2, 12, 32768)
    if STAMPS:
        g.salu("s_mov_b32", sWS[2], "0x10000000")
        g.salu("s_mov_b32", sWS[3], "0x00020000")
    g.valu("v_bfe_u32", t1, L, 4, 1)
    g.valu("v_lshlrev_b32", t0, 5, t1)
    g.valu("v_and_b32", t1, 1, L)
    g.valu("v_lshl_add_u32", t0, t1, 4, t0)
    g.valu("v_bfe_u32", t1, L, 1, 1)
    g.valu("v_lshl_add_u32", t0, t1, 3, t0)
    g.valu("v_bfe_u32", t1, L, 2, 2)
    g.valu("v_lshl_add_u32", t2, HF, 3, t1)
    g.valu("v_lshl_add_u32", t3, t2, 6, t0)
    g.valu("v_add_u32", vTR, sRING, t3)
    g.valu("v_lshl_add_u32", t3, t2, 8, t0)
    g.valu("v_xor_b32", t1, sW, t1)
    g.valu("v_lshl_add_u32", t3, t1, 6, t3)
    g.valu("v_add_u32", vTZ, HB, t3)
    g.valu("v_lshrrev_b32", t0, 4, I)
    g.valu("v_mul_u32_u24", t0, 4 * RP, t0)
    g.valu("v_and_b32", t1, 15, I)
    g.valu("v_mul_u32_u24", t2, PP, t1)
    g.valu("v_lshl_add_u32", t2, HF, 4, t2)
    g.valu("v_add_u32", t0, t0, t2)
    g.valu("v_add_u32", vB, HB, t0)
    g.valu("v_add_u32", t0, RP + PP, vB)
    g.valu("v_add_u32", vHW, s64w, t0)
    g.valu("v_xor_b32", t0, HF, t1)
    g.valu("v_lshlrev_b32", t0, 4, t0)
    g.valu("v_lshl_add_u32", vCs[0], I, 8, t0)
    for s in range(1, 8):
        g.valu("v_xor_b32", vCs[s], s << 5, vCs[0])
    g.valu("v_xor_b32", vXa[0], s64w, vCs[0])
    g.valu("v_xor_b32", vXa[1], 32, vXa[0])
    g.valu("v_add_u32", vLIN, sCDMA, vL16)
    g.salu("s_lshl_b32", sTMP, sW, 2)
    g.salu("s_add_u32", sTMP, sTMP, SB)
    g.valu("v_add_u32", vSW, sTMP, vL16)
    g.valu("v_lshlrev_b32", t0, 4, I)
    g.valu("v_add_u32", vSR, SB, t0)
    g.valu("v_bfe_u32", t0, I, 3, 1)
    g.valu("v_and_b32", t1, 3, I)
    g.valu("v_lshl_add_u32", t0, t0, 2, t1)
    g.valu("v_and_b32", t1, 1, t0)
    g.valu("v_lshlrev_b32", t1, 4, t1)
    g.salu("s_mov_b32", sTMP, "0x3f80")
    g.valu("v_lshlrev_b32", t1, t1, sTMP)
    g.valu("v_lshrrev_b32", t0, 1, t0)
    g.valu("v_lshrrev_b32", t2, 4, I)
    g.valu("v_lshl_add_u32", t0, t2, 2, t0)
    g.valu("v_bfe_u32", t2, I, 2, 1)
    g.valu("v_mov_b32", t3, 63)
    g.vcmp("v_cmp_eq_u32", t2, HF)
    g.cndmask(t0, t3, t0)
    for n0 in (0, 4):
        for n in range(n0, n0 + 4):
            pr = f"s[{90 + 2 * (n & 3)}:{91 + 2 * (n & 3)}]"
            g._emit(f"v_cmp_eq_u32 {pr}, {n}, {t0}", "valu", {f"s{90 + 2 * (n & 3)}", f"s{91 + 2 * (n & 3)}"}, t0.regs())
        for n in range(n0, n0 + 4):
            pr = f"s[{90 + 2 * (n & 3)}:{91 + 2 * (n & 3)}]"
            g._emit(f"v_cndmask_b32 {V(56 + n)}, 0, {t1}, {pr}", "valu", V(56 + n).regs(),
                    t1.regs() | {f"s{90 + 2 * (n & 3)}", f"s{91 + 2 * (n & 3)}"})

    def dfr0():
        g.salu("s_mov_b32", sL2E, "0x3fb8aa3b")
        g.salu("s_mov_b32", sINV, "0x3c000000")
        g.salu("s_mov_b32", sEPS, "0x3727c5ac")
        g.salu("s_sub_u32", sTBM, sTB, 32768 + 256)
        g.salu("s_sub_u32", sYM, sY0, 1)
        g.salu("s_sub_u32", sXM, sX0, 1)
        g.valu("v_mov_b32", vBIG, "0x7f000000")

    def dfr1():
        mk_srd(sXF, 4, 8388608)
        mk_srd(sOUT, 16, 8388608)
    deferred = {0: [(dfr0, 32), (lambda: ring_dma_setup(4, 0), 95), (lambda: ring_dma_setup(4, 1), 98), (dfr1, 36)],
                1: [(lambda: ring_dma_setup(5, 0), 105), (lambda: ring_dma_setup(5, 1), 108)],
                2: [(lambda: ring_hw_setup(4), 60), (lambda: ring_hw_setup(5), 75)]}
    if not cfg.get("defer", 1):
        for k_ in range(3):
            for f in deferred[k_]:
                f[0]()
        deferred = {}
    stamp("setup")
    for ev in cfg.get("issue_b", ["T1", "WARM", "T2" if cfg.get("order", [0, 1, 4, 2, 3, 5])[2] == 2 else "R4"]):
        do_issue(ev)
    stamp("issued")

    state = {"epoch": 0, "nread": 0}
    Q = []
    qpos = {"cur": 0, "pf": 0}
    reads_emitted = []

    def prefetch(depth=NB - 1):
        while qpos["pf"] < len(Q):
            it = Q[qpos["pf"]]
            if it.bsrc is None:
                if it.fn is not None and not it.emitted:
                    pass
                qpos["pf"] += 1
                continue
            ep = it.epoch() if callable(it.epoch) else it.epoch
            if ep is None or ep > state["epoch"]:
                break
            n = state["nread"]
            if n >= NB and not reads_emitted[n - NB].emitted:
                break
            ahead = sum(1 for x in reads_emitted[-NB:] if not x.emitted)
            if ahead >= depth:
                break
            it.buf = vBuf[n % NB]
            it.btok = g.ds_read(it.buf, it.bsrc[0], it.bsrc[1])
            reads_emitted.append(it)
            state["nread"] += 1
            qpos["pf"] += 1

    def btoks(it):
        toks = [it.btok]
        if cfg.get("pairwait", 1) and it.btok.idx >= g.done["lg"]:
            k = qpos["cur"] + 1
            if k < len(Q) and Q[k].btok is not None and not Q[k].emitted:
                if g.issued["lg"] - 1 - Q[k].btok.idx >= cfg.get("pairmin", 2):
                    toks.append(Q[k].btok)
        return toks

    def run(items, fillers, min_budget=12, spread=True):
        nm = sum(len(it.mf) for it in items)
        tot = sum(f[1] for f in fillers)
        per = max(min_budget, tot / nm if (nm and spread) else 0)
        fi = 0
        credit = 0
        tm = 0
        for it in items:
            assert Q[qpos["cur"]] is it
            if it.fn is not None:
                it.fn()
                it.emitted = True
                qpos["cur"] += 1
                continue
            prefetch()
            if it.btok is None:
                raise RuntimeError("B read not issued (epoch?)")
            pre_ = it.pre() if it.pre else []
            assert all(x is not None for x in pre_), "W not pumped"
            g.need(*btoks(it), *pre_)
            for k, (D, Aop, C) in enumerate(it.mf):
                g.mfma(D, Aop, it.buf, C)
                tm += 32
                if k == len(it.mf) - 1:
                    it.emitted = True
                    prefetch()
                credit = min(credit + per, 2 * per)
                while fi < len(fillers) and credit > 0:
                    f = fillers[fi]
                    if len(f) > 2 and f[2] > tm:
                        break
                    f[0]()
                    credit -= f[1]
                    fi += 1
            qpos["cur"] += 1
        while fi < len(fillers):
            fillers[fi][0]()
            fi += 1

    pending = []

    def sync(*toks):
        g.need(*toks, *pending)
        pending.clear()
        g.barrier()
        state["epoch"] += 1
        if state["epoch"] == cfg.get("delay_at"):
            g.raw(f"  s_mov_b32 s3, {cfg.get('delay_n', 17)}")
            g.raw("L_dly:")
            g.raw("  s_nop 13")
            g.raw("  s_sub_u32 s3, s3, 1")
            g.raw("  s_cmp_lg_u32 s3, 0")
            g.raw("  s_cbranch_scc1 L_dly")
            g.pos += 16
        if state["epoch"] in cfg.get("skew", []):
            n_ = state["epoch"]
            g.raw(f"  s_mov_b32 s3, s52")
            g.raw(f"L_sk{n_}:")
            g.raw(f"  s_cmp_eq_u32 s3, 0")
            g.raw(f"  s_cbranch_scc1 L_skd{n_}")
            for _ in range(cfg.get("skewn", 0)):
                g.raw("  s_nop 0")
            g.raw(f"  s_sub_u32 s3, s3, 1")
            g.raw(f"  s_branch L_sk{n_}")
            g.raw(f"L_skd{n_}:")
            g.pos += 3

    z1tr = {}

    def z1_items(t, acc, epoch):
        its = []
        for s in range(8):
            C = 0 if s == 0 else acc
            its.append(Item([(acc, vWZ[s], C)], bsrc=(vCs[s], cslot(t)), epoch=epoch, pre=(lambda s=s: [z1tr[s]])))
        for s in range(2):
            its.append(Item([(acc, vID[s], acc)], bsrc=(vXa[s], xslot(t)), epoch=epoch))
        return its

    def stats_ops(acc, buf):
        s1, s2 = vT[0], vT[1]
        ops = []
        ops.append((lambda: g.valu("v_add_f32", s1, acc[0], acc[1]), 4))
        ops.append((lambda: g.valu("v_mul_f32", s2, acc[0], acc[0]), 4))
        ops.append((lambda: g.valu("v_fmac_f32", s2, acc[1], acc[1]), 4))
        for i in range(2, 16):
            ops.append((lambda i=i: g.valu("v_add_f32", s1, s1, acc[i]), 4))
            ops.append((lambda i=i: g.valu("v_fmac_f32", s2, acc[i], acc[i]), 4))
        ops.append((lambda: g.permlane32_swap(s1, s2), 8))
        ops.append((lambda: g.valu("v_add_f32", s1, s1, s2), 4))
        ops.append((lambda: pending.append(g.ds_write(vSW, s1, buf * 1024)), 4))
        return ops

    def norm_ops(acc, buf, hw, hoff):
        st = vLN[0:8]
        y = vLN[8:16]
        e = vLN[16:24]
        pk = vLN[24:28]
        a_, b_, m_, v_ = vT[2], vT[3], vT[4], vT[5]
        tk = {}
        ops = []

        def rd():
            tk[0] = g.ds_read(st[0:4], vSR, buf * 1024)
            tk[1] = g.ds_read(st[4:8], vSR, buf * 1024 + 512)
        ops.append((rd, 24))

        def red():
            g.need(tk[0], tk[1])
            g.valu("v_add_f32", st[0], st[0], st[1])
            g.valu("v_add_f32", st[4], st[4], st[5])
            g.valu("v_add_f32", st[2], st[2], st[3])
            g.valu("v_add_f32", st[6], st[6], st[7])
            g.valu("v_add_f32", st[0], st[0], st[2])
            g.valu("v_add_f32", st[4], st[4], st[6])
        ops.append((red, 28))

        def fin():
            g.valu("v_mul_f32", m_, sINV, st[0])
            g.valu("v_mul_f32", v_, sINV, st[4])
            g.valu("v_fma_f32", v_, "-" + str(m_), m_, v_)
            g.valu("v_max_f32", v_, 0, v_)
            g.valu("v_add_f32", v_, sEPS, v_)
            g.valu("v_rsq_f32", v_, v_)
            g.valu("v_mul_f32", a_, sL2E, v_)
            g.valu("v_mul_f32", b_, m_, a_)
        ops.append((fin, 40))
        for h in range(2):
            for i in range(8):
                ops.append((lambda i=i, h=h: g.valu("v_fma_f32", y[i], acc[8 * h + i], a_, "-" + str(b_)), 5))
            for i in range(8):
                ops.append((lambda i=i: g.valu("v_exp_f32", e[i], "-" + str(y[i])), 8))
            for i in range(8):
                ops.append((lambda i=i: g.valu("v_fma_f32", e[i], e[i], sL2E, sL2E), 5))
            for i in range(8):
                ops.append((lambda i=i: g.valu("v_rcp_f32", e[i], e[i]), 8))
            for i in range(8):
                ops.append((lambda i=i: g.valu("v_mul_f32", y[i], y[i], e[i]), 4))
            for i in range(4):
                ops.append((lambda i=i: g.valu("v_cvt_pk_bf16_f32", pk[i], y[2 * i], y[2 * i + 1]), 5))
            ops.append((lambda h=h: pending.append(g.ds_write(hw, pk, hoff + 32 * h)), 12))
        return ops

    def pk(op, d, *srcs, mods=""):
        w = d.regs()
        r = set()
        for x in srcs:
            r |= x.regs()
        g._emit(f"{op} {d}, " + ", ".join(str(x) for x in srcs) + mods, "valu", w, r, cost=5)

    def stats_pk_ops(acc, buf):
        S1, S2 = V(24, 2), V(26, 2)
        ops = [(lambda: pk("v_pk_add_f32", S1, acc[0:2], acc[2:4]), 5),
               (lambda: pk("v_pk_mul_f32", S2, acc[0:2], acc[0:2]), 5),
               (lambda: pk("v_pk_fma_f32", S2, acc[2:4], acc[2:4], S2), 5)]
        for i in range(2, 8):
            ops.append((lambda i=i: pk("v_pk_add_f32", S1, S1, acc[2 * i:2 * i + 2]), 5))
            ops.append((lambda i=i: pk("v_pk_fma_f32", S2, acc[2 * i:2 * i + 2], acc[2 * i:2 * i + 2], S2), 5))

        def fin():
            g.valu("v_add_f32", S1[0], S1[0], S1[1])
            g.valu("v_add_f32", S2[0], S2[0], S2[1])
            g.permlane32_swap(S1[0], S2[0])
            g.valu("v_add_f32", S1[0], S1[0], S2[0])
            pending.append(g.ds_write(vSW, S1[0], buf * 1024))
        return ops, [(fin, 28)]

    def norm_pk_clusters(acc, buf, hw, hoff):
        st = vPK
        y = vLN[0:16]
        e = vLN[16:32]
        po = vPO
        A2, B2 = V(28, 2), V(30, 2)
        a_, nb_, m_, v_ = V(28), V(30), V(29), V(31)
        BC = " op_sel_hi:[1,0,0]"
        tk = {}

        def rd():
            tk[0] = g.ds_read(st[0:4], vSR, buf * 1024)
            tk[1] = g.ds_read(st[4:8], vSR, buf * 1024 + 512)

        def red():
            g.need(tk[0], tk[1])
            g.valu("v_add_f32", st[0], st[0], st[1])
            g.valu("v_add_f32", st[4], st[4], st[5])
            g.valu("v_add_f32", st[2], st[2], st[3])
            g.valu("v_add_f32", st[6], st[6], st[7])
            g.valu("v_add_f32", st[0], st[0], st[2])
            g.valu("v_add_f32", st[4], st[4], st[6])

        def fin1():
            g.valu("v_mul_f32", m_, sINV, st[0])
            g.valu("v_mul_f32", v_, sINV, st[4])
            g.valu("v_fma_f32", v_, "-" + str(m_), m_, v_)
            g.valu("v_max_f32", v_, 0, v_)

        def fin2():
            g.valu("v_add_f32", v_, sEPS, v_)
            g.valu("v_rsq_f32", v_, v_)
            g.valu("v_mul_f32", a_, sL2E, v_)
            g.valu("v_mul_f32", nb_, "-" + str(m_), a_)
        head = [(red, 28), (fin1, 18), (fin2, 24)]
        P1 = [(lambda i=i: pk("v_pk_fma_f32", y[2 * i:2 * i + 2], acc[2 * i:2 * i + 2], A2, B2, mods=BC), 5) for i in range(8)]
        T1 = [(lambda i=i: g.valu("v_exp_f32", e[i], "-" + str(y[i])), 8) for i in range(16)]
        P2 = [(lambda i=i: pk("v_pk_fma_f32", e[2 * i:2 * i + 2], e[2 * i:2 * i + 2], S(62, 2), S(62, 2), mods=BC), 5) for i in range(8)]
        T2 = [(lambda i=i: g.valu("v_rcp_f32", e[i], e[i]), 8) for i in range(16)]
        P3 = [(lambda i=i: pk("v_pk_mul_f32", y[2 * i:2 * i + 2], y[2 * i:2 * i + 2], e[2 * i:2 * i + 2]), 5) for i in range(8)]
        C = []
        for h in range(2):
            for i in range(4):
                C.append((lambda i=i, h=h: g.valu("v_cvt_pk_bf16_f32", po[4 * h + i], y[8 * h + 2 * i], y[8 * h + 2 * i + 1]), 5))
            C.append((lambda h=h: pending.append(g.ds_write(hw, po[4 * h:4 * h + 4], hoff + 32 * h)), 12))
        return rd, head, P1, T1, P2, T2, P3, C

    class Feeder:
        def __init__(self, items):
            self.items = items
            self.i = 0
            self.k = 0
            self.count = 0

        def left(self):
            return self.i < len(self.items)

        def one(self):
            it = self.items[self.i]
            if self.k == 0:
                assert Q[qpos["cur"]] is it
                prefetch()
                assert it.btok is not None
                pre_ = it.pre() if it.pre else []
                assert all(x is not None for x in pre_), "W not pumped"
                g.need(*btoks(it), *pre_)
            D, Aop, C = it.mf[self.k]
            g.mfma(D, Aop, it.buf, C)
            self.count += 1
            self.k += 1
            if self.k == len(it.mf):
                it.emitted = True
                qpos["cur"] += 1
                self.i += 1
                self.k = 0
                prefetch()

    def host(fd, ops, pitch=22, guard=30):
        rem = sum(o[1] for o in ops)
        since = pitch
        for o in ops:
            if fd.left() and since >= pitch and rem >= guard:
                fd.one()
                since = 0
            o[0]()
            since += o[1]
            rem -= o[1]

    wp = {"tr": 0, "iss": 0}

    def w_issue_ops(n, tmin=None):
        ops = []
        tt = ((tmin,) if tmin is not None else ())
        for _ in range(n):
            k = wp["iss"]
            if k >= NG:
                break
            assert k - NGS < wp["tr"], "ring overflow"

            def head(k=k):
                if k >= NGS:
                    assert wtr[3 * (k - NGS) + 2] is not None
                    g.need(wtr[3 * (k - NGS) + 2])
                g.salu("s_add_u32", "m0", sRING, (k % NGS) * 3072)
                g.salu("s_mov_b32", sWO, wunit_src(3 * k)[1])
            ops.append((head, 14) + tt)
            for i in range(3):
                f = 3 * k + i
                if f >= NW:
                    break

                def dm(f=f, i=i, k=k):
                    srd, _ = wunit_src(f)
                    assert mstate["m0"] == ("w", k), "m0 clobbered inside a W group"
                    vo = vWD[i] if f < 72 else vWZ2[i]
                    wdma[f] = g.dma(vo, srd, sWO, off=1024 * i, flags=FW)
                    if f == min(3 * k + 2, NW - 1) and k == cfg.get("gX", 22) - 1:
                        assert state["epoch"] >= XF_EPOCH, "xf issued too early (slots still in use)"
                        for j in range(4):
                            xf_ops(j)[0][0]()
                ops.append((dm, 20) + tt)
            ops[-(min(3, NW - 3 * k)) - 1] = ((lambda head=head, k=k: (head(), mstate.__setitem__("m0", ("w", k)))), 14) + tt
            wp["iss"] += 1
        return ops

    def w_tr_ops(n, tmin=None):
        ops = []
        tt = ((tmin,) if tmin is not None else ())
        for _ in range(n):
            k = wp["tr"]
            if k >= wp["iss"]:
                break
            fs = [f for f in range(3 * k, 3 * k + 3) if f < NW]
            for i, f in enumerate(fs):
                def tr(f=f, i=i, k=k, last=fs[-1]):
                    if i == 0:
                        g.need(wdma[last])
                    d = wunit_dst(f)
                    o = (k % NGS) * 3072 + 1024 * i
                    g.ds_tr(d[0:2], vTR, o)
                    wtr[f] = g.ds_tr(d[2:4], vTR, o + 256)
                ops.append((tr, 16) + tt)
            wp["tr"] += 1
        return ops

    def pump_ops(n, lag=1, tmin=None):
        ops = []
        for _ in range(n):
            if wp["tr"] >= NG:
                break
            ops += w_tr_ops(1, tmin)
            while wp["iss"] < NG and wp["iss"] - NGS <= wp["tr"] - 1 - lag:
                ops += w_issue_ops(1, tmin)
        return ops

    def conv_item(p, dj, s, epoch):
        mf, fs = [], []
        for di in range(3):
            j = p - di
            if 0 <= j <= 3:
                f = widx[(di, dj, s)]
                fs.append(f)
                mf.append((vAcc[j], wreg(f), vAcc[j]))
        return Item(mf, bsrc=(vB, p * RP + dj * PP + 32 * s), epoch=epoch, pre=(lambda fs=fs: [wtr[f] for f in fs]))

    xftok = {}

    def xf_ops(j):
        def f():
            g.salu("s_add_u32", "m0", sCDMA, xfbuf(j))
            mstate["m0"] = None
            xftok[j] = [g.dma(vC0, sXF, sT[j], flags=FX), g.dma(vC1, sXF, sT[j], off=1024, flags=FX)]
        return [(f, 24)]

    def z2_pre_ops(j, vPK=vPK):
        ops = []
        for h in range(2):
            for i in range(4):
                ops.append((lambda i=i, h=h: g.valu("v_cvt_pk_bf16_f32", vPK[4 * h + i], vAcc[j][8 * h + 2 * i],
                                                    vAcc[j][8 * h + 2 * i + 1]), 5))
            ops.append((lambda h=h: pending.append(g.ds_write(vXa[h], vPK[4 * h:4 * h + 4], ebuf(j))), 12))
        return ops

    def z2_items(j, epoch, vAcc2=vAcc2):
        its = []
        for s in range(8):
            C = 0 if s == 0 else vAcc2
            its.append(Item([(vAcc2, vWZ[s], C)], bsrc=(vCs[s], ebuf(j)), epoch=epoch, pre=(lambda s=s: [wtr[72 + s]])))
        for s in range(2):
            its.append(Item([(vAcc2, vID[s], vAcc2)], bsrc=(vXa[s], xfbuf(j)), epoch=epoch))
        return its

    def z2_post_ops(j, vAcc2=vAcc2, vPO=vPO):
        ops = []
        for h in range(2):
            for i in range(4):
                ops.append((lambda i=i, h=h: g.valu("v_cvt_pk_bf16_f32", vPO[4 * h + i], vAcc2[8 * h + 2 * i],
                                                    vAcc2[8 * h + 2 * i + 1]), 5))
            ops.append((lambda h=h: pending.append(g.ds_write(vXa[h], vPO[4 * h:4 * h + 4], xfbuf(j))), 12))
        return ops

    def out_ops(j, vOS=vOS):
        tk = {}
        ops = []

        def rd():
            tk[0] = g.ds_read(vOS[0:4], vLIN, xfbuf(j))
            tk[1] = g.ds_read(vOS[4:8], vLIN, xfbuf(j) + 1024)
        ops.append((rd, 24))

        def st0():
            g.need(tk[0])
            g.bstore(vOS[0:4], vC0, sOUT, sT[j], flags=FS)

        def st1():
            g.need(tk[1])
            g.bstore(vOS[4:8], vC1, sOUT, sT[j], off=1024, flags=FS)
        ops.append((lambda: None, 24))
        ops.append((st0, 12))
        ops.append((st1, 12))
        return ops

    accs = {0: vAcc[0], 1: vAcc[1], 2: vAcc[2], 3: vAcc[3], 4: vAcc2, 5: vAcc3}
    hws = {0: (vHW, 0), 1: (vHW, RP), 2: (vHW, 2 * RP), 3: (vHW, 3 * RP), 4: (vHWA, 0), 5: (vHWB, 0)}
    ES = cfg.get("early_s", NS // 3)
    dj0 = DJ[0]
    done_groups = set()

    def groups(ps, djs, ss, epoch):
        out = []
        for p in ps:
            for dj in djs:
                for s in ss:
                    if (p, dj, s) in done_groups:
                        continue
                    done_groups.add((p, dj, s))
                    out.append(conv_item(p, dj, s, epoch))
        return out

    ORDER = cfg.get("order", [0, 1, 4, 2, 3, 5])
    stepof = {t: k for k, t in enumerate(ORDER)}
    WBATCH = cfg.get("wbatch", NGS)
    EARLY = cfg.get("early", [0, 0, 0, 16, 32, 48])
    seq = [(dj, s) for dj in DJ for s in range(8)]

    def tiles_for(p, dj):
        need = set()
        for r in (p, p + 4):
            if r == 0:
                need |= {4, 5} if dj > 0 else {4}
            elif r == 9:
                need.add(5)
            else:
                need.add((r - 1) % 4)
                if dj != 1:
                    need.add(4)
        return need

    def first_step(p, dj):
        k = max(stepof[t] + 2 for t in tiles_for(p, dj))
        for di in range(3):
            j = p - di
            if 0 <= j <= 3:
                k = max(k, stepof[j] + 2)
        return k

    def vis_epoch(p, dj):
        return max(stepof[t] + 3 for t in tiles_for(p, dj))

    def issue_tile(t):
        if t < 4:
            issue_T(t)
        else:
            issue_R(t)
    GPS = cfg.get("gps", [0, 3, 3, 3, 4, 5])
    ROLL = cfg.get("roll", 4)
    NLEAD = cfg.get("nlead", 3)
    plan = []
    have_prev = 0
    for k in range(6):
        t = ORDER[k]
        have0 = wp["tr"]
        acts = []
        if k >= 1 and k + NSLOT - 1 <= 5:
            acts = [(lambda k=k, i=i: act_piece(ORDER[k + NSLOT - 1], i), 24) for i in range(4)]
        if k == 0:
            for ev in cfg.get("issue_c", ["T3", "WARM"]):
                if ev == "WARM":
                    acts = acts + [(issue_warm, 80)]
                else:
                    acts = acts + [(lambda ev=ev, i=i: act_piece(int(ev[1]), i), 24) for i in range(4)]
        acts = acts + deferred.get(k, [])
        wb = []
        tr0 = []
        if k <= ROLL:
            tr0 = w_tr_ops(min(wp["iss"], 21) - wp["tr"])
        have = wp["tr"]
        if k < ROLL:
            for _ in range(GPS[k]):
                if wp["iss"] - wp["tr"] < NGS:
                    wb.append(w_issue_ops(1))
        else:
            if k == ROLL:
                wb.append(w_issue_ops(NGS - 1))
            for _ in range(GPS[k]):
                b = []
                if wp["tr"] < min(21, wp["iss"]) and wp["iss"] - wp["tr"] >= NGS - 1:
                    b += w_tr_ops(1)
                if wp["iss"] - wp["tr"] < NGS:
                    b += w_issue_ops(1)
                wb.append(b)
        z = z1_items(t, accs[t], k + 1)
        lead, rest = [], []
        budget = EARLY[k]
        for p in (1, 2, 3, 4):
            for gi, (dj, s_) in enumerate(seq[:have]):
                if first_step(p, dj) <= k and (p, dj, s_) not in done_groups and budget > 0:
                    it = groups([p], [dj], [s_], vis_epoch(p, dj))
                    budget -= len(it[0].mf)
                    if len(lead) < NLEAD and vis_epoch(p, dj) <= k and gi < have0:
                        lead += it
                    else:
                        rest += it
        Q.extend(lead + z + rest)
        plan.append((t, acts, wb, tr0, lead, z, rest))

    for k in range(6):
        t, acts, wb, tr0, lead, z, rest = plan[k]
        if k == 0:
            sync(*z1dma, *atok[t])
            for s in range(8):
                g.ds_tr(vWZ[s][0:2], vTZ, s * 4096)
                z1tr[s] = g.ds_tr(vWZ[s][2:4], vTZ, s * 4096 + 1024)
            pending.append(z1tr[7])
        else:
            sync(*atok[t])
        stamp(f"step{k}")
        if cfg.get("pk") and k >= 1:
            tp = ORDER[k - 1]
            rd, nhead, P1, T1, P2, T2, P3, Cc = norm_pk_clusters(accs[tp], (k - 1) & 1, *hws[tp])
            SP, Sfin = stats_pk_ops(accs[t], k & 1)
            rd()
            prefetch()
            for o in tr0:
                o[0]()
            if k < ROLL:
                vmo = [o for b in wb for o in b] + acts
            else:
                vmo = list(acts) + [o for b in wb for o in b]
            fd = Feeder(lead + z + rest)
            nz = sum(len(i.mf) for i in lead) + 10
            nv = len(vmo)
            c1 = cfg.get("pkv1", 0.5)
            v1 = vmo[:int(nv * c1)]
            v2 = vmo[int(nv * c1):]
            host(fd, v1[:3] + nhead + v1[3:])
            for o in P1: o[0]()
            host(fd, T1)
            while fd.count < nz:
                fd.one()
            host(fd, v2[:len(v2) // 2] or [(lambda: None, 30)], guard=10 ** 9 if False else 30)
            for o in P2: o[0]()
            for o in SP: o[0]()
            host(fd, Sfin + T2)
            for o in P3: o[0]()
            tail_ops = Cc + v2[len(v2) // 2:]
            host(fd, tail_ops, guard=0)
            while fd.left():
                fd.one()
            continue
        tp = ORDER[k - 1] if k else None
        nrm = norm_ops(accs[tp], (k - 1) & 1, *hws[tp]) if k else []
        st = stats_ops(accs[t], k & 1)
        if nrm:
            nrm[0][0]()
            nrm = nrm[1:]
        prefetch()
        for o in tr0:
            o[0]()
        pre_roll = k < ROLL
        if pre_roll:
            head = [o for b in wb for o in b] + acts
            wbs = []
        else:
            head = list(acts)
            wbs = list(wb)
        tail = []
        if wbs:
            tail = wbs.pop()
        elif len(head) > 6:
            pass
        ncov = cfg.get("ncov", 3)
        if not lead and not tr0:
            for o in head[:ncov]:
                o[0]()
            head = head[ncov:]
        body = []
        tot = sum(f[1] for f in nrm) or 1
        marks = [((i + 0.3) / max(1, len(wbs)), b) for i, b in enumerate(wbs)]
        acc_c = 0
        mi = 0
        hi = 0
        for idx, op in enumerate(nrm):
            if hi < len(head) and idx % 2 == 1:
                body.append(head[hi]); hi += 1
            while mi < len(marks) and marks[mi][0] * tot <= acc_c:
                body += marks[mi][1]; mi += 1
            body.append(op)
            acc_c += op[1]
        body += head[hi:]
        for m in marks[mi:]:
            body += m[1]
        items = lead + z + rest
        nm = sum(len(i.mf) for i in items)
        nz = sum(len(i.mf) for i in lead) + 10
        total = sum(f[1] for f in body + st + tail)
        per = max(24, total / nm) if rest else 24
        cum = 0
        pos = len(body)
        for i, f in enumerate(body):
            if cum >= per * nz + 60:
                pos = i
                break
            cum += f[1]
        st = [(f[0], f[1], 32 * nz) for f in st]
        fill = body[:pos] + st + body[pos:] + tail
        if cfg.get("fine2") == k:
            nf = []
            for i, f in enumerate(fill):
                if i % 10 == 0:
                    nf.append((lambda i=i: stamp(f"f{i}"), 0) + tuple(f[2:]))
                nf.append(f)
            fill = nf
        run(items, fill, min_budget=per, spread=False)

    sync()
    stamp("step6")
    ep6 = state["epoch"]
    PK6 = cfg.get("pk") and cfg.get("pk6", 1)
    if PK6:
        rd, nhead, P1, T1, P2, T2, P3, Cc = norm_pk_clusters(accs[5], 5 & 1, *hws[5])
        tr6 = w_tr_ops(min(wp["iss"], 21) - wp["tr"])
        have6 = wp["tr"]
        vmo = w_issue_ops(NGS - (wp["iss"] - wp["tr"]))
        vmo += pump_ops(cfg.get("pump6", 2))
        assert wp["tr"] <= 21
        rest = []
        budget = cfg.get("early6", 24)
        for p in (1, 2, 3, 4):
            for (dj, s_) in seq[:have6]:
                if (p, dj, s_) not in done_groups and budget > 0:
                    rest += groups([p], [dj], [s_], ep6)
                    budget -= len(rest[-1].mf)
        Q.extend(rest)
        rd()
        for o in tr6:
            o[0]()
        prefetch()
        fd = Feeder(rest)
        h2 = len(vmo) // 2
        host(fd, vmo[:3] + nhead + vmo[3:h2])
        for o in P1: o[0]()
        host(fd, T1)
        for o in P2: o[0]()
        host(fd, T2)
        for o in P3: o[0]()
        host(fd, Cc + vmo[h2:], guard=0)
        while fd.left():
            fd.one()
        sync()
        stamp("step7")
        ep6 = state["epoch"]
    dW = cfg.get("dW", 240)
    tRB = 0 if PK6 else cfg.get("tRB", 900)
    have = wp["tr"]
    gX = cfg.get("gX", 22)
    dX = cfg.get("dX", 2200)

    def t_arr(k):
        if k < have:
            return 0
        tt = (k - have + 1) * dW
        if k >= gX:
            tt += dX
        return tt
    avail = {}
    for k, key in enumerate(seq):
        avail[key] = 0 if k < have else max(t_arr(k) + 120, tRB + 180 if k >= 21 else 0)
    prio = cfg.get("prio", [1, 2, 0, 5, 3, 4])
    todo = [(p, dj, s) for p in prio for (dj, s) in seq if (p, dj, s) not in done_groups]
    needM = {j: {(p, dj, s) for p in (j, j + 1, j + 2) for (dj, s) in seq} - done_groups for j in range(4)}
    tW2 = max(t_arr(26) + 120, t_arr(gX - NGS) + dX + 200, tRB + 180)
    events = []
    t = 0
    rb_done = bool(PK6)
    z2_ready = {}
    z2_started = set()
    zorder = []
    z2_last = -10**9
    z2_wait = {}
    NZ = 2 if cfg.get("joint", 1) else 4
    while todo or len(z2_started) < NZ:
        if not rb_done and t >= tRB:
            events.append(("rb", t))
            rb_done = True
        cand = None
        for j in range(NZ):
            if j in z2_ready and j not in z2_started and t >= z2_ready[j] and t >= tW2 and t >= z2_last + 320 + 128:
                cand = ("z2", j)
                break
        if cand is None:
            for key in todo:
                p, dj, s = key
                if avail[(dj, s)] <= t and (rb_done or p not in (0, 5)):
                    cand = ("g", key)
                    break
        if cand is None:
            t += 32
            if not todo and not rb_done:
                events.append(("rb", t)); rb_done = True
            continue
        events.append(cand + (t,))
        if cand[0] == "z2":
            z2_started.add(cand[1])
            z2_last = t
            t += 320
            for j in list(z2_wait):
                if z2_wait[j] and (j - 1) in z2_started:
                    z2_wait[j] = False
                    z2_ready[j] = t + cfg.get("z2lag", 192)
                    events.append(("z2pre", j, t))
        else:
            key = cand[1]
            todo.remove(key)
            p = key[0]
            t += 32 * len([di for di in range(3) if 0 <= p - di <= 3])
            for j in range(4):
                needM[j].discard(key)
                if not needM[j] and j not in z2_ready and j not in z2_wait and j < NZ:
                    z2_wait[j] = True
            for j in list(z2_wait):
                if z2_wait[j] and (NSLOT == 4 or j < 2 or (j - 1) in z2_started):
                    z2_wait[j] = False
                    z2_ready[j] = t + cfg.get("z2lag", 192)
                    events.append(("z2pre", j, t))
    sys.stderr.write(f"modelled main phase {t} cycles; z2 starts {[e[2] for e in events if e[0]=='z2']}\n")

    EARLYOUT = cfg.get("earlyout", 0)
    if EARLYOUT:
        zs = [e for e in events if e[0] == "z2"]
        for n_, e in enumerate(zs):
            t_o = e[2] + 320 + 64 + EARLYOUT
            nxt = zs[n_ + 1][2] if n_ + 1 < len(zs) else None
            if nxt is not None and nxt - t_o > 256 or (nxt is None and NZ == 2):
                pos = max(i for i, x in enumerate(events) if x[-1] <= t_o) + 1
                events.insert(pos, ("osync", e[1], t_o))
    outdone = set()
    items = []
    fillers = []
    epochs = {}
    if not PK6:
        fillers += [(f[0], f[1], 0) for f in norm_ops(accs[5], 5 & 1, *hws[5])]
    pump_timed = w_issue_ops(NGS - (wp["iss"] - wp["tr"]), tmin=0)
    for k in range(have, NG):
        tm_ = t_arr(k) - 60
        if k >= 21:
            tm_ = max(tm_, tRB)
        pump_timed += pump_ops(1, tmin=tm_)
    xf_timed = []
    timed = []
    for f in pump_timed + xf_timed:
        timed.append(f)
    last_post = None
    for ev in events:
        if ev[0] == "g":
            p, dj, s = ev[1]
            ep = ep6 if (PK6 or p not in (0, 5)) else (lambda: epochs.get("rb"))
            items.append(conv_item(p, dj, s, ep))
        elif ev[0] == "rb":
            def f_rb():
                sync()
                epochs["rb"] = state["epoch"]
                stamp("step7")
            items.append(Item([], fn=f_rb))
            items[-1].kind = ("rb", ev[1])
        elif ev[0] == "osync":
            j = ev[1]
            it = Item([], fn=(lambda: sync()))
            it.kind = ("osync", ev[2])
            items.append(it)
            timed += [(f[0], f[1], ev[2] + 1) for f in out_ops(j)]
            outdone.add(j)
        elif ev[0] == "z2pre":
            j = ev[1]
            timed += [(f[0], f[1], ev[2]) for f in z2_pre_ops(j)]
        elif ev[0] == "z2":
            j = ev[1]

            def f_z(j=j):
                sync(*xftok[j])
                epochs[("z", j)] = state["epoch"]
                stamp(f"z2_{j}")
            it = Item([], fn=f_z)
            it.kind = ("z2sync", ev[2], j)
            items.append(it)
            items += z2_items(j, (lambda j=j: epochs.get(("z", j))))
            timed += [(f[0], f[1], ev[2] + 320 + 64) for f in z2_post_ops(j)]
            if j > 0 and zorder[-1] not in outdone:
                timed += [(f[0], f[1], ev[2] + 32) for f in out_ops(zorder[-1])]
            zorder.append(j)
    timed.sort(key=lambda f: f[2])
    allf = fillers + timed
    Q.extend(items)

    fi = 0
    tm = 0
    credit = 0
    per = cfg.get("per", 16)
    for it in items:
        assert Q[qpos["cur"]] is it
        if it.fn is not None:
            tl = it.kind[1]
            while fi < len(allf) and allf[fi][2] <= tl:
                allf[fi][0]()
                fi += 1
            it.fn()
            it.emitted = True
            qpos["cur"] += 1
            continue
        prefetch()
        if it.btok is None:
            raise RuntimeError("B read not issued (epoch?)")
        pre = it.pre() if it.pre else []
        while any(x is None for x in pre):
            allf[fi][0]()
            fi += 1
            pre = it.pre()
        g.need(*btoks(it), *pre)
        for k, (D, Aop, C) in enumerate(it.mf):
            g.mfma(D, Aop, it.buf, C)
            tm += 32
            c0 = g.cost
            if k == len(it.mf) - 1:
                it.emitted = True
                prefetch()
            credit = min(credit, 0) + cfg.get("gap", 20) - (g.cost - c0)
            while fi < len(allf) and credit > 0 and allf[fi][2] <= tm:
                allf[fi][0]()
                credit -= allf[fi][1]
                fi += 1
        qpos["cur"] += 1
    while fi < len(allf):
        allf[fi][0]()
        fi += 1
    if NZ == 2:
        vS3 = [V(224 + i) for i in range(10)]
        p2 = z2_pre_ops(2, vPK)
        for f in p2:
            f[0]()
        for i in range(8):
            g.valu("v_add_u32", vS3[i], WB, vCs[i])
        for h in range(2):
            g.valu("v_add_u32", vS3[8 + h], WB, vXa[h])
            for i in range(4):
                g.valu("v_cvt_pk_bf16_f32", vOS[4 * h + i], vAcc[3][8 * h + 2 * i], vAcc[3][8 * h + 2 * i + 1])
            pending.append(g.ds_write(vS3[8 + h], vOS[4 * h:4 * h + 4], 0))
        sync(*xftok[2], *xftok[3])
        stamp("z2_2")
        e_ = state["epoch"]
        za, zb = z2_items(2, e_, vAcc2), z2_items(3, e_, vAcc3)
        for i in range(8):
            zb[i].bsrc = (vS3[i], 0)
        zz = za[:5] + [x for pr in zip(za[5:], zb[:5]) for x in pr] + zb[5:]
        Q.extend(zz)
        run(zz, ([] if 1 in outdone else out_ops(1, vPK)) + [(f[0], f[1], 32 * 17) for f in z2_post_ops(2, vAcc2, vPO)], min_budget=24, spread=False)
        for f in z2_post_ops(3, vAcc3, vOS):
            f[0]()
        sync()
        stamp("z2_3")
        o2, o3 = out_ops(2, vAcc2[0:8]), out_ops(3, vAcc2[8:16])
        o2[0][0](); o3[0][0]()
        for f in o2[2:] + o3[2:]:
            f[0]()
    else:
        sync()
        for f in out_ops(zorder[-1]):
            f[0]()
    stamp("end")
    if STAMPS:
        g.raw("  s_waitcnt vmcnt(0)")
        g.raw("  s_memtime s[74:75]")
        g.raw("  s_memrealtime s[98:99]")
        g.raw("  s_waitcnt lgkmcnt(0)")
        n = len(stamps)
        g.raw(f"  s_mov_b32 s{76 + n}, s74")
        n += 1
        stamps.append("drained")
        g.raw("  s_lshl_b32 s3, s2, 2")
        g.raw("  s_add_u32 s3, s3, s52")
        g.raw("  s_lshl_b32 s3, s3, 7")
        g.raw("  v_mov_b32 v0, 0")
        for i in range(n):
            g.raw(f"  v_mov_b32 v1, s{76 + i}")
            g.raw(f"  buffer_store_dword v1, v0, s[48:51], s3 offen offset:{4 * i}")
        g.raw("  v_mov_b32 v1, s96")
        g.raw(f"  buffer_store_dword v1, v0, s[48:51], s3 offen offset:{4 * 30}")
        g.raw("  v_mov_b32 v1, s98")
        g.raw(f"  buffer_store_dword v1, v0, s[48:51], s3 offen offset:{4 * 31}")
    g.raw("L_end:")
    g.raw("  s_endpgm")
    tail = """.section .rodata,"a"
.p2align 6
.amdhsa_kernel standalone__controlnet__diffusion_kernel
  .amdhsa_next_free_vgpr 512
  .amdhsa_next_free_sgpr 102
  .amdhsa_accum_offset 256
  .amdhsa_group_segment_fixed_size 0
  .amdhsa_kernarg_size 72
  .amdhsa_user_sgpr_count 2
  .amdhsa_user_sgpr_kernarg_segment_ptr 1
  .amdhsa_system_sgpr_workgroup_id_x 1
.end_amdhsa_kernel
"""
    sys.stderr.write(f"est issue cycles {g.cost}, nops {g.nops}, lines {len(g.lines)}, NS {NS}\n")
    if STAMPS:
        open(cfg.get("_out", "x") + ".names", "w").write(",".join(stamps))
    return "\n".join(hdr) + "\n" + g.text() + tail


if __name__ == "__main__":
    import json
    out = sys.argv[1]
    cfg = json.loads(sys.argv[2]) if len(sys.argv) > 2 else {}
    cfg["_out"] = out
    open(out, "w").write(build(cfg))
```

```python
import sys
from dsl import *

RP = 4928
PP = 272
import os
NSLOT = int(os.environ.get('NSLOT', 4))
AB = 0
HB = AB + NSLOT * 16384
SB = HB + 10 * RP
WB = SB + 2048
NS = (163840 - WB) // 12288 * 3
LDS_BYTES = WB + NS * 4096
assert LDS_BYTES <= 163840
SLOT = {}
def cslot(t): return AB + SLOT[t] * 16384
def xslot(t): return AB + SLOT[t] * 16384 + 8192
if NSLOT == 3:
    def xfbuf(j): return AB + j * 8192
    def ebuf(j): return AB + 2 * 16384 + (j & 1) * 8192
    XF_EPOCH = 6
    DUMMY = AB + 2 * 16384
else:
    def xfbuf(j): return AB + 2 * 16384 + j * 8192
    def ebuf(j): return AB + j * 8192
    XF_EPOCH = 5
    DUMMY = AB

sXF, sX, sC, sOUT, sWZ1, sWZ2, sWC, sWS = (S(20, 4), S(24, 4), S(28, 4), S(32, 4), S(36, 4), S(40, 4), S(44, 4), S(48, 4))
sW = S(52); sTB = S(53); sRING = S(54); sZ1ST = S(55); sCDMA = S(56); s64w = S(57)
sYM = S(58); sXM = S(59); sY0 = S(60); sX0 = S(61); sL2E = S(62); sINV = S(63); sEPS = S(64); sTBM = S(65)
sT = [S(66), S(67), S(68), S(69)]
sTMP = S(70); sTMP2 = S(71); sTMP3 = S(72); sWO = S(73)

vLIN = V(1); vC0 = V(2); vC1 = V(3); vWS = V(4); vTR = V(5); vTZ = V(6); vB = V(7)
vCs = [V(8 + s) for s in range(8)]
vHW = V(16); vHWA = V(17); vHWB = V(18); vSW = V(19); vSR = V(20); vXa = [V(21), V(22)]
vT = [V(23 + i) for i in range(9)]
NB = 6
vBuf = [V(32 + 4 * i, 4) for i in range(NB)]
vID = [V(56, 4), V(60, 4)]
vRG = {4: [V(64), V(65)], 5: [V(66), V(67)]}
vWD = [V(4), V(92), V(93)]
vWZ2 = [V(4), V(94), V(95)]
vPK = V(68, 8)
vPO = V(76, 8)
vOS = V(84, 8)
vAcc3 = V(96, 16)
vAcc2 = V(112, 16)
vAcc = [V(128 + 16 * j, 16) for j in range(4)]
vWZ = [V(192 + 4 * f, 4) for f in range(8)]
vLN = V(224, 32)


def wreg(f):
    return A(4 * f, 4) if f < 64 else V(224 + 4 * (f - 64), 4)


class Item:
    def __init__(self, mf, bsrc=None, epoch=0, pre=None, fn=None):
        self.mf = mf
        self.bsrc = bsrc
        self.epoch = epoch
        self.pre = pre
        self.fn = fn
        self.btok = None
        self.buf = None
        self.emitted = False


def build(cfg):
    g = G()
    hdr = [f"; @launch grid=(256,1,1) block=(256,1,1) lds={LDS_BYTES}",
           '.amdgcn_target "amdgcn-amd-amdhsa--gfx950"', ".text",
           ".globl standalone__controlnet__diffusion_kernel", ".p2align 8",
           ".type standalone__controlnet__diffusion_kernel,@function",
           "standalone__controlnet__diffusion_kernel:"]
    stamps = []
    STAMPS = cfg.get("stamps")

    def stamp(name):
        if not STAMPS:
            return
        if isinstance(STAMPS, list) and name not in STAMPS:
            return
        n = len(stamps)
        assert n < 19
        stamps.append(name)
        sys.stderr.write(f"  stamp {name}: est {g.cost} instrs {len(g.lines)} nops {g.nops}\n")
        g.raw("  s_memtime s[74:75]")
        g.raw("  s_waitcnt lgkmcnt(0)")
        g.done["lg"] = g.issued["lg"]
        g.raw(f"  s_mov_b32 s{76 + n}, s74")
        g.pos += 3

    DJ = cfg.get("dj_order", (1, 0, 2))
    for k_, t_ in enumerate(cfg.get("order", [0, 1, 4, 2, 3, 5])):
        SLOT[t_] = k_ % NSLOT
    FA = cfg.get("fa", " nt"); FX = cfg.get("fx", " nt"); FS = cfg.get("fs", " nt"); FWARM = cfg.get("fwarm", ""); FW = cfg.get("fw", ""); FZ = cfg.get("fz", "")

    g.sop("s_cmp_ge_u32 s2, 256", r={"s2"})
    g.sop("s_cbranch_scc1 L_end")
    g.raw("  s_load_dwordx16 s[4:19], s[0:1], 0")
    if STAMPS:
        g.raw("  s_load_dwordx2 s[48:49], s[0:1], 64")
        g.raw("  s_memrealtime s[96:97]")
    g.pos += 2
    stamp("start")
    L = V(96); I = V(97); HF = V(99); t0 = V(100); t1 = V(101); t2 = V(98); t3 = V(102); vZS = V(103)
    vL16 = V(104)
    g.valu("v_and_b32", L, 63, V(0))
    g.valu("v_lshrrev_b32", t0, 6, V(0))
    g.readfirstlane(sW, t0)
    g.valu("v_and_b32", I, 31, V(0))
    g.valu("v_bfe_u32", HF, V(0), 5, 1)
    if cfg.get("codepf"):
        nl = cfg["codepf"]
        g.raw("  s_getpc_b64 s[90:91]")
        g.raw("L_pc:")
        g.pos += 1
        g.salu("s_lshr_b32", sTMP, "s2", 3)
        g.salu("s_lshl_b32", sTMP, sTMP, 2)
        g.salu("s_add_u32", sTMP, sTMP, sW)
        g.salu("s_mul_i32", sTMP, sTMP, nl * 128)
        g.valu("v_and_b32", t0, nl - 1, V(0))
        g.valu("v_lshlrev_b32", t0, 7, t0)
        g.valu("v_add_u32", t0, sTMP, t0)
        g.valu("v_min_u32", t0, "L_end-L_pc", t0)
        g.valu("v_mov_b32", t1, S(91))
        g._emit(f"v_add_co_u32 {t0}, vcc, s90, {t0}", "valu", t0.regs() | {"vcc"}, t0.regs())
        g._emit(f"v_addc_co_u32 {t1}, vcc, 0, {t1}, vcc", "valu", t1.regs() | {"vcc"}, t1.regs() | {"vcc"})
        g.raw("  global_load_dword a235, v[100:101], off")
        g.pos += 1
        g._tok("vm")
    g.salu("s_and_b32", sTMP, "s2", 7)
    g.salu("s_lshl_b32", sTMP, sTMP, 5)
    g.salu("s_lshr_b32", sTMP2, "s2", 3)
    g.salu("s_add_u32", sTMP, sTMP, sTMP2)
    g.salu("s_lshr_b32", sTMP3, sTMP, 3)
    g.salu("s_lshl_b32", sTB, sTMP3, 18)
    g.salu("s_and_b32", sY0, sTMP3, 15)
    g.salu("s_lshl_b32", sY0, sY0, 3)
    g.salu("s_and_b32", sX0, sTMP, 7)
    g.salu("s_lshl_b32", sTMP3, sX0, 12)
    g.salu("s_lshl_b32", sX0, sX0, 4)
    g.salu("s_add_u32", sTB, sTB, sTMP3)
    g.salu("s_mov_b32", sT[0], sTB)
    for j in range(1, 4):
        g.salu("s_add_u32", sT[j], sTB, j * 32768)
    g.salu("s_lshl_b32", sCDMA, sW, 11)
    g.salu("s_lshl_b32", s64w, sW, 6)
    g.salu("s_lshr_b32", sTMP, sW, 1)
    g.salu("s_lshl_b32", sTMP, sTMP, 17)
    g.salu("s_and_b32", sTMP2, sW, 1)
    g.salu("s_lshl_b32", sTMP2, sTMP2, 3)
    g.valu("v_lshrrev_b32", t3, 4, L)
    g.valu("v_add_u32", t0, sTMP2, t3)
    g.valu("v_and_b32", t1, 15, L)
    g.valu("v_xor_b32", t2, t1, t0)
    g.valu("v_lshlrev_b32", t2, 4, t2)
    g.valu("v_lshl_add_u32", t2, t0, 8, t2)
    g.valu("v_add_u32", vC0, sTMP, t2)
    g.valu("v_add_u32", t0, 4, t0)
    g.valu("v_xor_b32", t2, t1, t0)
    g.valu("v_lshlrev_b32", t2, 4, t2)
    g.valu("v_lshl_add_u32", t2, t0, 8, t2)
    g.valu("v_add_u32", t2, sTMP, t2)
    g.valu("v_subrev_u32", vC1, 1024, t2)
    g.valu("v_bfe_u32", t0, L, 2, 2)
    g.valu("v_xor_b32", t0, t0, t3)
    g.valu("v_lshlrev_b32", t0, 6, t0)
    g.valu("v_lshl_add_u32", t0, t3, 8, t0)
    g.valu("v_and_b32", t1, 3, L)
    g.valu("v_lshl_add_u32", vZS, t1, 4, t0)
    g.valu("v_lshrrev_b32", t0, 2, L)
    g.valu("v_lshlrev_b32", t0, 8, t0)
    g.valu("v_lshl_add_u32", t0, t1, 4, t0)
    g.valu("v_add_u32", vWS, s64w, t0)
    g.valu("v_add_u32", vWD[1], 98304 - 1024, vWS)
    g.valu("v_add_u32", vWD[2], 2 * (98304 - 1024), vWS)
    g.valu("v_add_u32", vWZ2[1], 4096 - 1024, vWS)
    g.valu("v_add_u32", vWZ2[2], 2 * (4096 - 1024), vWS)
    g.valu("v_lshlrev_b32", vL16, 4, L)
    g.salu("s_mul_i32", sTMP3, sW, NS * 1024)
    g.salu("s_add_u32", sRING, sTMP3, WB)
    g.salu("s_lshl_b32", sZ1ST, sW, 13)
    g.raw("  s_waitcnt lgkmcnt(0)")
    g.pos += 1

    def mk_srd(srd, p, n):
        g.salu("s_mov_b32", srd[0], S(p))
        g.salu("s_mov_b32", srd[1], S(p + 1))
        g.salu("s_mov_b32", srd[2], n)
        g.salu("s_mov_b32", srd[3], "0x00020000")
    mk_srd(sC, 8, 8388608)
    mk_srd(sX, 6, 8388608)

    atok = {}
    mstate = {"m0": None}

    def issue_T(j):
        g.salu("s_add_u32", "m0", sCDMA, cslot(j))
        a = g.dma(vC0, sC, sT[j], flags=FA)
        b = g.dma(vC1, sC, sT[j], off=1024, flags=FA)
        g.salu("s_add_u32", "m0", sCDMA, xslot(j))
        c = g.dma(vC0, sX, sT[j], flags=FA)
        d = g.dma(vC1, sX, sT[j], off=1024, flags=FA)
        atok[j] = [a, b, c, d]

    def act_piece(t, i):
        srd, base = ((sC, cslot(t)), (sX, xslot(t)))[i >> 1]
        g.salu("s_add_u32", "m0", sCDMA, base)
        mstate["m0"] = None
        if t < 4:
            tok = g.dma((vC0, vC1)[i & 1], srd, sT[t], off=1024 * (i & 1), flags=FA)
        else:
            tok = g.dma(vRG[t][i & 1], srd, 0, off=1024 * (i & 1), flags=FA)
        atok.setdefault(t, []).append(tok)

    def issue_R(t):
        toks = []
        for srd, base in ((sC, cslot(t)), (sX, xslot(t))):
            g.salu("s_add_u32", "m0", sCDMA, base)
            toks.append(g.dma(vRG[t][0], srd, 0, flags=FA))
            toks.append(g.dma(vRG[t][1], srd, 0, off=1024, flags=FA))
        atok[t] = toks

    worder = []
    for dj in DJ:
        for s in range(8):
            for di in range(3):
                worder.append((di, dj, s))
    widx = {k: f for f, k in enumerate(worder)}
    NW = 80
    wdma = [None] * NW
    wtr = [None] * NW

    def wunit_src(f):
        if f < 72:
            di, dj, s = worder[f]
            return sWC, ((di * 3 + dj) * 128 + 16 * s) * 256
        return sWZ2, (f - 72) * 4096

    def wunit_dst(f):
        return wreg(f) if f < 72 else vWZ[f - 72]

    NG = 27
    NGS = NS // 3

    def issue_WG(k):
        g.salu("s_add_u32", "m0", sRING, (k % NGS) * 3072)
        f0 = 3 * k
        srd, off = wunit_src(f0)
        g.salu("s_mov_b32", sTMP, off)
        for i in range(3):
            f = f0 + i
            if f >= NW:
                break
            vo = vWD[i] if f < 72 else vWZ2[i]
            wdma[f] = g.dma(vo, srd, sTMP, off=1024 * i, flags=FW)

    def tr_WG(k):
        fs = [f for f in range(3 * k, 3 * k + 3) if f < NW]
        g.need(wdma[fs[-1]])
        for i, f in enumerate(fs):
            d = wunit_dst(f)
            o = (k % NGS) * 3072 + 1024 * i
            g.ds_tr(d[0:2], vTR, o)
            wtr[f] = g.ds_tr(d[2:4], vTR, o + 256)

    z1dma = []

    def issue_wz1(hs=(0, 1)):
        for h in hs:
            g.salu("s_add_u32", "m0", sZ1ST, HB + h * 4096)
            g.salu("s_add_u32", sTMP, sZ1ST, h * 4096)
            for m in range(4):
                z1dma.append(g.dma(vZS, sWZ1, sTMP, off=m * 1024, flags=FZ))

    def issue_warm():
        g.salu("s_lshr_b32", sTMP2, "s2", 3)
        g.salu("s_mul_i32", sTMP, sTMP2, 9216)
        g.salu("s_lshl_b32", sTMP3, sW, 10)
        g.salu("s_add_u32", sTMP, sTMP, sTMP3)
        g.bload(A(240, 4), vL16, sWC, sTMP, flags=FWARM)
        g.salu("s_add_u32", sTMP, sTMP, 4096)
        g.bload(A(244, 4), vL16, sWC, sTMP, flags=FWARM)
        g.valu("v_and_b32", t0, 0xf0, vL16)
        g.salu("s_mul_i32", sTMP, sTMP2, 9216)
        g.salu("s_lshl_b32", sTMP3, sW, 8)
        g.salu("s_add_u32", sTMP, sTMP, sTMP3)
        g.salu("s_add_u32", sTMP, sTMP, 8192)
        g.bload(A(248, 4), t0, sWC, sTMP, flags=FWARM)
        g.salu("s_lshl_b32", sTMP, sTMP2, 10)
        g.salu("s_add_u32", sTMP, sTMP, sTMP3)
        g.bload(A(252, 4), t0, sWZ2, sTMP, flags=FWARM)
        if cfg.get("warm_z1", True):
            g.bload(A(236, 4), t0, sWZ1, sTMP, flags=FWARM)

    vBIG = V(105)

    def ring_coords(tile, idx, hr, hc, tmp):
        if tile == 4:
            g.vcmp("v_cmp_gt_u32", 16, idx)
            g.valu("v_lshrrev_b32", hr, 1, idx)
            g.valu("v_add_u32", hr, 1, hr)
            g.valu("v_and_b32", hc, 1, idx)
            g.valu("v_mul_u32_u24", hc, 17, hc)
            g.valu("v_subrev_u32", tmp, 16, idx)
            g.cndmask(hr, 0, hr)
            g.cndmask(hc, tmp, hc)
        else:
            g.vcmp("v_cmp_gt_u32", 18, idx)
            g.valu("v_subrev_u32", tmp, 2, idx)
            g.valu("v_mov_b32", hr, 9)
            g.cndmask(hr, 0, hr)
            g.cndmask(hc, tmp, idx)
            g.vcmp("v_cmp_gt_u32", 20, idx)
            g.valu("v_mov_b32", tmp, 64)
            g.cndmask(hr, tmp, hr)

    hr_, hc_, tmp_, idx_, sw_, d_ = V(106), V(107), V(108), V(109), V(110), V(111)

    def ring_dma_setup(tile, e):
        hr, hc, tmp, idx, sw = hr_, hc_, tmp_, idx_, sw_
        dst = vRG[tile][e]
        g.salu("s_lshl_b32", sTMP2, sW, 3)
        g.salu("s_add_u32", sTMP2, sTMP2, 4 * e)
        g.valu("v_lshrrev_b32", idx, 4, L)
        g.valu("v_add_u32", idx, sTMP2, idx)
        ring_coords(tile, idx, hr, hc, tmp)
        g.valu("v_add_u32", tmp, sYM, hr)
        g.valu("v_add_u32", d_, sXM, hc)
        g.valu("v_max_u32", tmp, tmp, d_)
        if tile == 5:
            g.valu("v_lshlrev_b32", d_, 3, hr)
            g.valu("v_max_u32", tmp, tmp, d_)
        g.vcmp("v_cmp_gt_u32", 128, tmp)
        g.valu("v_lshlrev_b32", dst, 15, hr)
        g.valu("v_lshl_add_u32", dst, hc, 8, dst)
        g.valu("v_add_u32", dst, sTBM, dst)
        g.valu("v_xor_b32", sw, idx, L)
        g.valu("v_and_b32", sw, 15, sw)
        g.valu("v_lshl_add_u32", dst, sw, 4, dst)
        if e == 1:
            g.valu("v_subrev_u32", dst, 1024, dst)
        g.cndmask(dst, vBIG, dst)

    def ring_hw_setup(tile):
        hr, hc, tmp = hr_, hc_, tmp_
        ring_coords(tile, I, hr, hc, tmp)
        hw = vHWA if tile == 4 else vHWB
        if tile == 5:
            g.vcmp("v_cmp_gt_u32", 10, hr)
        g.valu("v_mul_u32_u24", hw, RP, hr)
        g.valu("v_mul_u32_u24", tmp, PP, hc)
        g.valu("v_add3_u32", hw, hw, tmp, s64w)
        g.valu("v_lshl_add_u32", hw, HF, 4, hw)
        g.valu("v_add_u32", hw, HB, hw)
        if tile == 5:
            g.valu("v_mov_b32", tmp, DUMMY)
            g.cndmask(hw, tmp, hw)

    mk_srd(sWZ1, 10, 32768)

    def do_issue(ev):
        if ev[0] == "T":
            issue_T(int(ev[1]))
        elif ev == "R4":
            issue_R(4)
        elif ev == "Z":
            issue_wz1()
        elif ev == "Za":
            issue_wz1((0,))
        elif ev == "Zb":
            issue_wz1((1,))
        elif ev == "WARM":
            issue_warm()
        stamp("i" + ev)
    for ev in cfg.get("issue_a", ["T0", "Z"]):
        do_issue(ev)

    mk_srd(sWC, 14, 294912)
    mk_srd(sWZ2, 12, 32768)
    if STAMPS:
        g.salu("s_mov_b32", sWS[2], "0x10000000")
        g.salu("s_mov_b32", sWS[3], "0x00020000")
    g.valu("v_bfe_u32", t1, L, 4, 1)
    g.valu("v_lshlrev_b32", t0, 5, t1)
    g.valu("v_and_b32", t1, 1, L)
    g.valu("v_lshl_add_u32", t0, t1, 4, t0)
    g.valu("v_bfe_u32", t1, L, 1, 1)
    g.valu("v_lshl_add_u32", t0, t1, 3, t0)
    g.valu("v_bfe_u32", t1, L, 2, 2)
    g.valu("v_lshl_add_u32", t2, HF, 3, t1)
    g.valu("v_lshl_add_u32", t3, t2, 6, t0)
    g.valu("v_add_u32", vTR, sRING, t3)
    g.valu("v_lshl_add_u32", t3, t2, 8, t0)
    g.valu("v_xor_b32", t1, sW, t1)
    g.valu("v_lshl_add_u32", t3, t1, 6, t3)
    g.valu("v_add_u32", vTZ, HB, t3)
    g.valu("v_lshrrev_b32", t0, 4, I)
    g.valu("v_mul_u32_u24", t0, 4 * RP, t0)
    g.valu("v_and_b32", t1, 15, I)
    g.valu("v_mul_u32_u24", t2, PP, t1)
    g.valu("v_lshl_add_u32", t2, HF, 4, t2)
    g.valu("v_add_u32", t0, t0, t2)
    g.valu("v_add_u32", vB, HB, t0)
    g.valu("v_add_u32", t0, RP + PP, vB)
    g.valu("v_add_u32", vHW, s64w, t0)
    g.valu("v_xor_b32", t0, HF, t1)
    g.valu("v_lshlrev_b32", t0, 4, t0)
    g.valu("v_lshl_add_u32", vCs[0], I, 8, t0)
    for s in range(1, 8):
        g.valu("v_xor_b32", vCs[s], s << 5, vCs[0])
    g.valu("v_xor_b32", vXa[0], s64w, vCs[0])
    g.valu("v_xor_b32", vXa[1], 32, vXa[0])
    g.valu("v_add_u32", vLIN, sCDMA, vL16)
    g.salu("s_lshl_b32", sTMP, sW, 2)
    g.salu("s_add_u32", sTMP, sTMP, SB)
    g.valu("v_add_u32", vSW, sTMP, vL16)
    g.valu("v_lshlrev_b32", t0, 4, I)
    g.valu("v_add_u32", vSR, SB, t0)
    g.valu("v_bfe_u32", t0, I, 3, 1)
    g.valu("v_and_b32", t1, 3, I)
    g.valu("v_lshl_add_u32", t0, t0, 2, t1)
    g.valu("v_and_b32", t1, 1, t0)
    g.valu("v_lshlrev_b32", t1, 4, t1)
    g.salu("s_mov_b32", sTMP, "0x3f80")
    g.valu("v_lshlrev_b32", t1, t1, sTMP)
    g.valu("v_lshrrev_b32", t0, 1, t0)
    g.valu("v_lshrrev_b32", t2, 4, I)
    g.valu("v_lshl_add_u32", t0, t2, 2, t0)
    g.valu("v_bfe_u32", t2, I, 2, 1)
    g.valu("v_mov_b32", t3, 63)
    g.vcmp("v_cmp_eq_u32", t2, HF)
    g.cndmask(t0, t3, t0)
    for n0 in (0, 4):
        for n in range(n0, n0 + 4):
            pr = f"s[{90 + 2 * (n & 3)}:{91 + 2 * (n & 3)}]"
            g._emit(f"v_cmp_eq_u32 {pr}, {n}, {t0}", "valu", {f"s{90 + 2 * (n & 3)}", f"s{91 + 2 * (n & 3)}"}, t0.regs())
        for n in range(n0, n0 + 4):
            pr = f"s[{90 + 2 * (n & 3)}:{91 + 2 * (n & 3)}]"
            g._emit(f"v_cndmask_b32 {V(56 + n)}, 0, {t1}, {pr}", "valu", V(56 + n).regs(),
                    t1.regs() | {f"s{90 + 2 * (n & 3)}", f"s{91 + 2 * (n & 3)}"})

    def dfr0():
        g.salu("s_mov_b32", sL2E, "0x3fb8aa3b")
        g.salu("s_mov_b32", sINV, "0x3c000000")
        g.salu("s_mov_b32", sEPS, "0x3727c5ac")
        g.salu("s_sub_u32", sTBM, sTB, 32768 + 256)
        g.salu("s_sub_u32", sYM, sY0, 1)
        g.salu("s_sub_u32", sXM, sX0, 1)
        g.valu("v_mov_b32", vBIG, "0x7f000000")

    def dfr1():
        mk_srd(sXF, 4, 8388608)
        mk_srd(sOUT, 16, 8388608)
    deferred = {0: [(dfr0, 32), (lambda: ring_dma_setup(4, 0), 95), (lambda: ring_dma_setup(4, 1), 98), (dfr1, 36)],
                1: [(lambda: ring_dma_setup(5, 0), 105), (lambda: ring_dma_setup(5, 1), 108)],
                2: [(lambda: ring_hw_setup(4), 60), (lambda: ring_hw_setup(5), 75)]}
    if not cfg.get("defer", 1):
        for k_ in range(3):
            for f in deferred[k_]:
                f[0]()
        deferred = {}
    stamp("setup")
    for ev in cfg.get("issue_b", ["T1", "WARM", "T2" if cfg.get("order", [0, 1, 4, 2, 3, 5])[2] == 2 else "R4"]):
        do_issue(ev)
    stamp("issued")

    state = {"epoch": 0, "nread": 0}
    Q = []
    qpos = {"cur": 0, "pf": 0}
    reads_emitted = []

    def prefetch(depth=NB - 1):
        while qpos["pf"] < len(Q):
            it = Q[qpos["pf"]]
            if it.bsrc is None:
                if it.fn is not None and not it.emitted:
                    pass
                qpos["pf"] += 1
                continue
            ep = it.epoch() if callable(it.epoch) else it.epoch
            if ep is None or ep > state["epoch"]:
                break
            n = state["nread"]
            if n >= NB and not reads_emitted[n - NB].emitted:
                break
            ahead = sum(1 for x in reads_emitted[-NB:] if not x.emitted)
            if ahead >= depth:
                break
            it.buf = vBuf[n % NB]
            it.btok = g.ds_read(it.buf, it.bsrc[0], it.bsrc[1])
            reads_emitted.append(it)
            state["nread"] += 1
            qpos["pf"] += 1

    def btoks(it):
        toks = [it.btok]
        if cfg.get("pairwait", 1) and it.btok.idx >= g.done["lg"]:
            k = qpos["cur"] + 1
            if k < len(Q) and Q[k].btok is not None and not Q[k].emitted:
                if g.issued["lg"] - 1 - Q[k].btok.idx >= cfg.get("pairmin", 2):
                    toks.append(Q[k].btok)
        return toks

    def run(items, fillers, min_budget=12, spread=True):
        nm = sum(len(it.mf) for it in items)
        tot = sum(f[1] for f in fillers)
        per = max(min_budget, tot / nm if (nm and spread) else 0)
        fi = 0
        credit = 0
        tm = 0
        for it in items:
            assert Q[qpos["cur"]] is it
            if it.fn is not None:
                it.fn()
                it.emitted = True
                qpos["cur"] += 1
                continue
            prefetch()
            if it.btok is None:
                raise RuntimeError("B read not issued (epoch?)")
            pre_ = it.pre() if it.pre else []
            assert all(x is not None for x in pre_), "W not pumped"
            g.need(*btoks(it), *pre_)
            for k, (D, Aop, C) in enumerate(it.mf):
                g.mfma(D, Aop, it.buf, C)
                tm += 32
                if k == len(it.mf) - 1:
                    it.emitted = True
                    prefetch()
                credit = min(credit + per, 2 * per)
                while fi < len(fillers) and credit > 0:
                    f = fillers[fi]
                    if len(f) > 2 and f[2] > tm:
                        break
                    f[0]()
                    credit -= f[1]
                    fi += 1
            qpos["cur"] += 1
        while fi < len(fillers):
            fillers[fi][0]()
            fi += 1

    pending = []

    def sync(*toks):
        g.need(*toks, *pending)
        pending.clear()
        g.barrier()
        state["epoch"] += 1
        if state["epoch"] == cfg.get("delay_at"):
            g.raw(f"  s_mov_b32 s3, {cfg.get('delay_n', 17)}")
            g.raw("L_dly:")
            g.raw("  s_nop 13")
            g.raw("  s_sub_u32 s3, s3, 1")
            g.raw("  s_cmp_lg_u32 s3, 0")
            g.raw("  s_cbranch_scc1 L_dly")
            g.pos += 16
        if state["epoch"] in cfg.get("skew", []):
            n_ = state["epoch"]
            g.raw(f"  s_mov_b32 s3, s52")
            g.raw(f"L_sk{n_}:")
            g.raw(f"  s_cmp_eq_u32 s3, 0")
            g.raw(f"  s_cbranch_scc1 L_skd{n_}")
            for _ in range(cfg.get("skewn", 0)):
                g.raw("  s_nop 0")
            g.raw(f"  s_sub_u32 s3, s3, 1")
            g.raw(f"  s_branch L_sk{n_}")
            g.raw(f"L_skd{n_}:")
            g.pos += 3

    z1tr = {}

    def z1_items(t, acc, epoch):
        its = []
        for s in range(8):
            C = 0 if s == 0 else acc
            its.append(Item([(acc, vWZ[s], C)], bsrc=(vCs[s], cslot(t)), epoch=epoch, pre=(lambda s=s: [z1tr[s]])))
        for s in range(2):
            its.append(Item([(acc, vID[s], acc)], bsrc=(vXa[s], xslot(t)), epoch=epoch))
        return its

    def stats_ops(acc, buf):
        s1, s2 = vT[0], vT[1]
        ops = []
        ops.append((lambda: g.valu("v_add_f32", s1, acc[0], acc[1]), 4))
        ops.append((lambda: g.valu("v_mul_f32", s2, acc[0], acc[0]), 4))
        ops.append((lambda: g.valu("v_fmac_f32", s2, acc[1], acc[1]), 4))
        for i in range(2, 16):
            ops.append((lambda i=i: g.valu("v_add_f32", s1, s1, acc[i]), 4))
            ops.append((lambda i=i: g.valu("v_fmac_f32", s2, acc[i], acc[i]), 4))
        ops.append((lambda: g.permlane32_swap(s1, s2), 8))
        ops.append((lambda: g.valu("v_add_f32", s1, s1, s2), 4))
        ops.append((lambda: pending.append(g.ds_write(vSW, s1, buf * 1024)), 4))
        return ops

    def norm_ops(acc, buf, hw, hoff):
        st = vLN[0:8]
        y = vLN[8:16]
        e = vLN[16:24]
        pk = vLN[24:28]
        a_, b_, m_, v_ = vT[2], vT[3], vT[4], vT[5]
        tk = {}
        ops = []

        def rd():
            tk[0] = g.ds_read(st[0:4], vSR, buf * 1024)
            tk[1] = g.ds_read(st[4:8], vSR, buf * 1024 + 512)
        ops.append((rd, 24))

        def red():
            g.need(tk[0], tk[1])
            g.valu("v_add_f32", st[0], st[0], st[1])
            g.valu("v_add_f32", st[4], st[4], st[5])
            g.valu("v_add_f32", st[2], st[2], st[3])
            g.valu("v_add_f32", st[6], st[6], st[7])
            g.valu("v_add_f32", st[0], st[0], st[2])
            g.valu("v_add_f32", st[4], st[4], st[6])
        ops.append((red, 28))

        def fin():
            g.valu("v_mul_f32", m_, sINV, st[0])
            g.valu("v_mul_f32", v_, sINV, st[4])
            g.valu("v_fma_f32", v_, "-" + str(m_), m_, v_)
            g.valu("v_max_f32", v_, 0, v_)
            g.valu("v_add_f32", v_, sEPS, v_)
            g.valu("v_rsq_f32", v_, v_)
            g.valu("v_mul_f32", a_, sL2E, v_)
            g.valu("v_mul_f32", b_, m_, a_)
        ops.append((fin, 40))
        for h in range(2):
            for i in range(8):
                ops.append((lambda i=i, h=h: g.valu("v_fma_f32", y[i], acc[8 * h + i], a_, "-" + str(b_)), 5))
            for i in range(8):
                ops.append((lambda i=i: g.valu("v_exp_f32", e[i], "-" + str(y[i])), 8))
            for i in range(8):
                ops.append((lambda i=i: g.valu("v_fma_f32", e[i], e[i], sL2E, sL2E), 5))
            for i in range(8):
                ops.append((lambda i=i: g.valu("v_rcp_f32", e[i], e[i]), 8))
            for i in range(8):
                ops.append((lambda i=i: g.valu("v_mul_f32", y[i], y[i], e[i]), 4))
            for i in range(4):
                ops.append((lambda i=i: g.valu("v_cvt_pk_bf16_f32", pk[i], y[2 * i], y[2 * i + 1]), 5))
            ops.append((lambda h=h: pending.append(g.ds_write(hw, pk, hoff + 32 * h)), 12))
        return ops

    def pk(op, d, *srcs, mods=""):
        w = d.regs()
        r = set()
        for x in srcs:
            r |= x.regs()
        g._emit(f"{op} {d}, " + ", ".join(str(x) for x in srcs) + mods, "valu", w, r, cost=5)

    def stats_pk_ops(acc, buf):
        S1, S2 = V(24, 2), V(26, 2)
        ops = [(lambda: pk("v_pk_add_f32", S1, acc[0:2], acc[2:4]), 5),
               (lambda: pk("v_pk_mul_f32", S2, acc[0:2], acc[0:2]), 5),
               (lambda: pk("v_pk_fma_f32", S2, acc[2:4], acc[2:4], S2), 5)]
        for i in range(2, 8):
            ops.append((lambda i=i: pk("v_pk_add_f32", S1, S1, acc[2 * i:2 * i + 2]), 5))
            ops.append((lambda i=i: pk("v_pk_fma_f32", S2, acc[2 * i:2 * i + 2], acc[2 * i:2 * i + 2], S2), 5))

        def fin():
            g.valu("v_add_f32", S1[0], S1[0], S1[1])
            g.valu("v_add_f32", S2[0], S2[0], S2[1])
            g.permlane32_swap(S1[0], S2[0])
            g.valu("v_add_f32", S1[0], S1[0], S2[0])
            pending.append(g.ds_write(vSW, S1[0], buf * 1024))
        return ops, [(fin, 28)]

    def norm_pk_clusters(acc, buf, hw, hoff):
        st = vPK
        y = vLN[0:16]
        e = vLN[16:32]
        po = vPO
        A2, B2 = V(28, 2), V(30, 2)
        a_, nb_, m_, v_ = V(28), V(30), V(29), V(31)
        BC = " op_sel_hi:[1,0,0]"
        tk = {}

        def rd():
            tk[0] = g.ds_read(st[0:4], vSR, buf * 1024)
            tk[1] = g.ds_read(st[4:8], vSR, buf * 1024 + 512)

        def red():
            g.need(tk[0], tk[1])
            g.valu("v_add_f32", st[0], st[0], st[1])
            g.valu("v_add_f32", st[4], st[4], st[5])
            g.valu("v_add_f32", st[2], st[2], st[3])
            g.valu("v_add_f32", st[6], st[6], st[7])
            g.valu("v_add_f32", st[0], st[0], st[2])
            g.valu("v_add_f32", st[4], st[4], st[6])

        def fin1():
            g.valu("v_mul_f32", m_, sINV, st[0])
            g.valu("v_mul_f32", v_, sINV, st[4])
            g.valu("v_fma_f32", v_, "-" + str(m_), m_, v_)
            g.valu("v_max_f32", v_, 0, v_)

        def fin2():
            g.valu("v_add_f32", v_, sEPS, v_)
            g.valu("v_rsq_f32", v_, v_)
            g.valu("v_mul_f32", a_, sL2E, v_)
            g.valu("v_mul_f32", nb_, "-" + str(m_), a_)
        head = [(red, 28), (fin1, 18), (fin2, 24)]
        P1 = [(lambda i=i: pk("v_pk_fma_f32", y[2 * i:2 * i + 2], acc[2 * i:2 * i + 2], A2, B2, mods=BC), 5) for i in range(8)]
        T1 = [(lambda i=i: g.valu("v_exp_f32", e[i], "-" + str(y[i])), 8) for i in range(16)]
        P2 = [(lambda i=i: pk("v_pk_fma_f32", e[2 * i:2 * i + 2], e[2 * i:2 * i + 2], S(62, 2), S(62, 2), mods=BC), 5) for i in range(8)]
        T2 = [(lambda i=i: g.valu("v_rcp_f32", e[i], e[i]), 8) for i in range(16)]
        P3 = [(lambda i=i: pk("v_pk_mul_f32", y[2 * i:2 * i + 2], y[2 * i:2 * i + 2], e[2 * i:2 * i + 2]), 5) for i in range(8)]
        C = []
        for h in range(2):
            for i in range(4):
                C.append((lambda i=i, h=h: g.valu("v_cvt_pk_bf16_f32", po[4 * h + i], y[8 * h + 2 * i], y[8 * h + 2 * i + 1]), 5))
            C.append((lambda h=h: pending.append(g.ds_write(hw, po[4 * h:4 * h + 4], hoff + 32 * h)), 12))
        return rd, head, P1, T1, P2, T2, P3, C

    class Feeder:
        def __init__(self, items):
            self.items = items
            self.i = 0
            self.k = 0
            self.count = 0

        def left(self):
            return self.i < len(self.items)

        def one(self):
            it = self.items[self.i]
            if self.k == 0:
                assert Q[qpos["cur"]] is it
                prefetch()
                assert it.btok is not None
                pre_ = it.pre() if it.pre else []
                assert all(x is not None for x in pre_), "W not pumped"
                g.need(*btoks(it), *pre_)
            D, Aop, C = it.mf[self.k]
            g.mfma(D, Aop, it.buf, C)
            self.count += 1
            self.k += 1
            if self.k == len(it.mf):
                it.emitted = True
                qpos["cur"] += 1
                self.i += 1
                self.k = 0
                prefetch()

    def host(fd, ops, pitch=22, guard=30):
        rem = sum(o[1] for o in ops)
        since = pitch
        for o in ops:
            if fd.left() and since >= pitch and rem >= guard:
                fd.one()
                since = 0
            o[0]()
            since += o[1]
            rem -= o[1]

    wp = {"tr": 0, "iss": 0}

    def w_issue_ops(n, tmin=None):
        ops = []
        tt = ((tmin,) if tmin is not None else ())
        for _ in range(n):
            k = wp["iss"]
            if k >= NG:
                break
            assert k - NGS < wp["tr"], "ring overflow"

            def head(k=k):
                if k >= NGS:
                    assert wtr[3 * (k - NGS) + 2] is not None
                    g.need(wtr[3 * (k - NGS) + 2])
                g.salu("s_add_u32", "m0", sRING, (k % NGS) * 3072)
                g.salu("s_mov_b32", sWO, wunit_src(3 * k)[1])
            ops.append((head, 14) + tt)
            for i in range(3):
                f = 3 * k + i
                if f >= NW:
                    break

                def dm(f=f, i=i, k=k):
                    srd, _ = wunit_src(f)
                    assert mstate["m0"] == ("w", k), "m0 clobbered inside a W group"
                    vo = vWD[i] if f < 72 else vWZ2[i]
                    wdma[f] = g.dma(vo, srd, sWO, off=1024 * i, flags=FW)
                    if f == min(3 * k + 2, NW - 1) and k == cfg.get("gX", 22) - 1:
                        assert state["epoch"] >= XF_EPOCH, "xf issued too early (slots still in use)"
                        for j in range(4):
                            xf_ops(j)[0][0]()
                ops.append((dm, 20) + tt)
            ops[-(min(3, NW - 3 * k)) - 1] = ((lambda head=head, k=k: (head(), mstate.__setitem__("m0", ("w", k)))), 14) + tt
            wp["iss"] += 1
        return ops

    def w_tr_ops(n, tmin=None):
        ops = []
        tt = ((tmin,) if tmin is not None else ())
        for _ in range(n):
            k = wp["tr"]
            if k >= wp["iss"]:
                break
            fs = [f for f in range(3 * k, 3 * k + 3) if f < NW]
            for i, f in enumerate(fs):
                def tr(f=f, i=i, k=k, last=fs[-1]):
                    if i == 0:
                        g.need(wdma[last])
                    d = wunit_dst(f)
                    o = (k % NGS) * 3072 + 1024 * i
                    g.ds_tr(d[0:2], vTR, o)
                    wtr[f] = g.ds_tr(d[2:4], vTR, o + 256)
                ops.append((tr, 16) + tt)
            wp["tr"] += 1
        return ops

    def pump_ops(n, lag=1, tmin=None):
        ops = []
        for _ in range(n):
            if wp["tr"] >= NG:
                break
            ops += w_tr_ops(1, tmin)
            while wp["iss"] < NG and wp["iss"] - NGS <= wp["tr"] - 1 - lag:
                ops += w_issue_ops(1, tmin)
        return ops

    def conv_item(p, dj, s, epoch):
        mf, fs = [], []
        for di in range(3):
            j = p - di
            if 0 <= j <= 3:
                f = widx[(di, dj, s)]
                fs.append(f)
                mf.append((vAcc[j], wreg(f), vAcc[j]))
        return Item(mf, bsrc=(vB, p * RP + dj * PP + 32 * s), epoch=epoch, pre=(lambda fs=fs: [wtr[f] for f in fs]))

    xftok = {}

    def xf_ops(j):
        def f():
            g.salu("s_add_u32", "m0", sCDMA, xfbuf(j))
            mstate["m0"] = None
            xftok[j] = [g.dma(vC0, sXF, sT[j], flags=FX), g.dma(vC1, sXF, sT[j], off=1024, flags=FX)]
        return [(f, 24)]

    def z2_pre_ops(j, vPK=vPK):
        ops = []
        for h in range(2):
            for i in range(4):
                ops.append((lambda i=i, h=h: g.valu("v_cvt_pk_bf16_f32", vPK[4 * h + i], vAcc[j][8 * h + 2 * i],
                                                    vAcc[j][8 * h + 2 * i + 1]), 5))
            ops.append((lambda h=h: pending.append(g.ds_write(vXa[h], vPK[4 * h:4 * h + 4], ebuf(j))), 12))
        return ops

    def z2_items(j, epoch, vAcc2=vAcc2):
        its = []
        for s in range(8):
            C = 0 if s == 0 else vAcc2
            its.append(Item([(vAcc2, vWZ[s], C)], bsrc=(vCs[s], ebuf(j)), epoch=epoch, pre=(lambda s=s: [wtr[72 + s]])))
        for s in range(2):
            its.append(Item([(vAcc2, vID[s], vAcc2)], bsrc=(vXa[s], xfbuf(j)), epoch=epoch))
        return its

    def z2_post_ops(j, vAcc2=vAcc2, vPO=vPO):
        ops = []
        for h in range(2):
            for i in range(4):
                ops.append((lambda i=i, h=h: g.valu("v_cvt_pk_bf16_f32", vPO[4 * h + i], vAcc2[8 * h + 2 * i],
                                                    vAcc2[8 * h + 2 * i + 1]), 5))
            ops.append((lambda h=h: pending.append(g.ds_write(vXa[h], vPO[4 * h:4 * h + 4], xfbuf(j))), 12))
        return ops

    def out_ops(j, vOS=vOS):
        tk = {}
        ops = []

        def rd():
            tk[0] = g.ds_read(vOS[0:4], vLIN, xfbuf(j))
            tk[1] = g.ds_read(vOS[4:8], vLIN, xfbuf(j) + 1024)
        ops.append((rd, 24))

        def st0():
            g.need(tk[0])
            g.bstore(vOS[0:4], vC0, sOUT, sT[j], flags=FS)

        def st1():
            g.need(tk[1])
            g.bstore(vOS[4:8], vC1, sOUT, sT[j], off=1024, flags=FS)
        ops.append((lambda: None, 24))
        ops.append((st0, 12))
        ops.append((st1, 12))
        return ops

    accs = {0: vAcc[0], 1: vAcc[1], 2: vAcc[2], 3: vAcc[3], 4: vAcc2, 5: vAcc3}
    hws = {0: (vHW, 0), 1: (vHW, RP), 2: (vHW, 2 * RP), 3: (vHW, 3 * RP), 4: (vHWA, 0), 5: (vHWB, 0)}
    ES = cfg.get("early_s", NS // 3)
    dj0 = DJ[0]
    done_groups = set()

    def groups(ps, djs, ss, epoch):
        out = []
        for p in ps:
            for dj in djs:
                for s in ss:
                    if (p, dj, s) in done_groups:
                        continue
                    done_groups.add((p, dj, s))
                    out.append(conv_item(p, dj, s, epoch))
        return out

    ORDER = cfg.get("order", [0, 1, 4, 2, 3, 5])
    stepof = {t: k for k, t in enumerate(ORDER)}
    WBATCH = cfg.get("wbatch", NGS)
    EARLY = cfg.get("early", [0, 0, 0, 16, 32, 48])
    seq = [(dj, s) for dj in DJ for s in range(8)]

    def tiles_for(p, dj):
        need = set()
        for r in (p, p + 4):
            if r == 0:
                need |= {4, 5} if dj > 0 else {4}
            elif r == 9:
                need.add(5)
            else:
                need.add((r - 1) % 4)
                if dj != 1:
                    need.add(4)
        return need

    def first_step(p, dj):
        k = max(stepof[t] + 2 for t in tiles_for(p, dj))
        for di in range(3):
            j = p - di
            if 0 <= j <= 3:
                k = max(k, stepof[j] + 2)
        return k

    def vis_epoch(p, dj):
        return max(stepof[t] + 3 for t in tiles_for(p, dj))

    def issue_tile(t):
        if t < 4:
            issue_T(t)
        else:
            issue_R(t)
    GPS = cfg.get("gps", [0, 3, 3, 3, 4, 5])
    ROLL = cfg.get("roll", 4)
    NLEAD = cfg.get("nlead", 3)
    plan = []
    have_prev = 0
    for k in range(6):
        t = ORDER[k]
        have0 = wp["tr"]
        acts = []
        if k >= 1 and k + NSLOT - 1 <= 5:
            acts = [(lambda k=k, i=i: act_piece(ORDER[k + NSLOT - 1], i), 24) for i in range(4)]
        if k == 0:
            for ev in cfg.get("issue_c", ["T3", "WARM"]):
                if ev == "WARM":
                    acts = acts + [(issue_warm, 80)]
                else:
                    acts = acts + [(lambda ev=ev, i=i: act_piece(int(ev[1]), i), 24) for i in range(4)]
        acts = acts + deferred.get(k, [])
        wb = []
        tr0 = []
        if k <= ROLL:
            tr0 = w_tr_ops(min(wp["iss"], 21) - wp["tr"])
        have = wp["tr"]
        if k < ROLL:
            for _ in range(GPS[k]):
                if wp["iss"] - wp["tr"] < NGS:
                    wb.append(w_issue_ops(1))
        else:
            if k == ROLL:
                wb.append(w_issue_ops(NGS - 1))
            for _ in range(GPS[k]):
                b = []
                if wp["tr"] < min(21, wp["iss"]) and wp["iss"] - wp["tr"] >= NGS - 1:
                    b += w_tr_ops(1)
                if wp["iss"] - wp["tr"] < NGS:
                    b += w_issue_ops(1)
                wb.append(b)
        z = z1_items(t, accs[t], k + 1)
        lead, rest = [], []
        budget = EARLY[k]
        for p in (1, 2, 3, 4):
            for gi, (dj, s_) in enumerate(seq[:have]):
                if first_step(p, dj) <= k and (p, dj, s_) not in done_groups and budget > 0:
                    it = groups([p], [dj], [s_], vis_epoch(p, dj))
                    budget -= len(it[0].mf)
                    if len(lead) < NLEAD and vis_epoch(p, dj) <= k and gi < have0:
                        lead += it
                    else:
                        rest += it
        Q.extend(lead + z + rest)
        plan.append((t, acts, wb, tr0, lead, z, rest))

    for k in range(6):
        t, acts, wb, tr0, lead, z, rest = plan[k]
        if k == 0:
            sync(*z1dma, *atok[t])
            for s in range(8):
                g.ds_tr(vWZ[s][0:2], vTZ, s * 4096)
                z1tr[s] = g.ds_tr(vWZ[s][2:4], vTZ, s * 4096 + 1024)
            pending.append(z1tr[7])
        else:
            sync(*atok[t])
        stamp(f"step{k}")
        if cfg.get("pk") and k >= 1:
            tp = ORDER[k - 1]
            rd, nhead, P1, T1, P2, T2, P3, Cc = norm_pk_clusters(accs[tp], (k - 1) & 1, *hws[tp])
            SP, Sfin = stats_pk_ops(accs[t], k & 1)
            rd()
            prefetch()
            for o in tr0:
                o[0]()
            if k < ROLL:
                vmo = [o for b in wb for o in b] + acts
            else:
                vmo = list(acts) + [o for b in wb for o in b]
            fd = Feeder(lead + z + rest)
            nz = sum(len(i.mf) for i in lead) + 10
            nv = len(vmo)
            c1 = cfg.get("pkv1", 0.5)
            v1 = vmo[:int(nv * c1)]
            v2 = vmo[int(nv * c1):]
            host(fd, v1[:3] + nhead + v1[3:])
            for o in P1: o[0]()
            host(fd, T1)
            while fd.count < nz:
                fd.one()
            host(fd, v2[:len(v2) // 2] or [(lambda: None, 30)], guard=10 ** 9 if False else 30)
            for o in P2: o[0]()
            for o in SP: o[0]()
            host(fd, Sfin + T2)
            for o in P3: o[0]()
            tail_ops = Cc + v2[len(v2) // 2:]
            host(fd, tail_ops, guard=0)
            while fd.left():
                fd.one()
            continue
        tp = ORDER[k - 1] if k else None
        nrm = norm_ops(accs[tp], (k - 1) & 1, *hws[tp]) if k else []
        st = stats_ops(accs[t], k & 1)
        if nrm:
            nrm[0][0]()
            nrm = nrm[1:]
        prefetch()
        for o in tr0:
            o[0]()
        pre_roll = k < ROLL
        if pre_roll:
            head = [o for b in wb for o in b] + acts
            wbs = []
        else:
            head = list(acts)
            wbs = list(wb)
        tail = []
        if wbs:
            tail = wbs.pop()
        elif len(head) > 6:
            pass
        ncov = cfg.get("ncov", 3)
        if not lead and not tr0:
            for o in head[:ncov]:
                o[0]()
            head = head[ncov:]
        body = []
        tot = sum(f[1] for f in nrm) or 1
        marks = [((i + 0.3) / max(1, len(wbs)), b) for i, b in enumerate(wbs)]
        acc_c = 0
        mi = 0
        hi = 0
        for idx, op in enumerate(nrm):
            if hi < len(head) and idx % 2 == 1:
                body.append(head[hi]); hi += 1
            while mi < len(marks) and marks[mi][0] * tot <= acc_c:
                body += marks[mi][1]; mi += 1
            body.append(op)
            acc_c += op[1]
        body += head[hi:]
        for m in marks[mi:]:
            body += m[1]
        items = lead + z + rest
        nm = sum(len(i.mf) for i in items)
        nz = sum(len(i.mf) for i in lead) + 10
        total = sum(f[1] for f in body + st + tail)
        per = max(24, total / nm) if rest else 24
        cum = 0
        pos = len(body)
        for i, f in enumerate(body):
            if cum >= per * nz + 60:
                pos = i
                break
            cum += f[1]
        st = [(f[0], f[1], 32 * nz) for f in st]
        fill = body[:pos] + st + body[pos:] + tail
        if cfg.get("fine2") == k:
            nf = []
            for i, f in enumerate(fill):
                if i % 10 == 0:
                    nf.append((lambda i=i: stamp(f"f{i}"), 0) + tuple(f[2:]))
                nf.append(f)
            fill = nf
        run(items, fill, min_budget=per, spread=False)

    sync()
    stamp("step6")
    ep6 = state["epoch"]
    PK6 = cfg.get("pk") and cfg.get("pk6", 1)
    if PK6:
        rd, nhead, P1, T1, P2, T2, P3, Cc = norm_pk_clusters(accs[5], 5 & 1, *hws[5])
        tr6 = w_tr_ops(min(wp["iss"], 21) - wp["tr"])
        have6 = wp["tr"]
        vmo = w_issue_ops(NGS - (wp["iss"] - wp["tr"]))
        vmo += pump_ops(cfg.get("pump6", 2))
        assert wp["tr"] <= 21
        rest = []
        budget = cfg.get("early6", 24)
        for p in (1, 2, 3, 4):
            for (dj, s_) in seq[:have6]:
                if (p, dj, s_) not in done_groups and budget > 0:
                    rest += groups([p], [dj], [s_], ep6)
                    budget -= len(rest[-1].mf)
        Q.extend(rest)
        rd()
        for o in tr6:
            o[0]()
        prefetch()
        fd = Feeder(rest)
        h2 = len(vmo) // 2
        host(fd, vmo[:3] + nhead + vmo[3:h2])
        for o in P1: o[0]()
        host(fd, T1)
        for o in P2: o[0]()
        host(fd, T2)
        for o in P3: o[0]()
        host(fd, Cc + vmo[h2:], guard=0)
        while fd.left():
            fd.one()
        sync()
        stamp("step7")
        ep6 = state["epoch"]
    dW = cfg.get("dW", 240)
    tRB = 0 if PK6 else cfg.get("tRB", 900)
    have = wp["tr"]
    gX = cfg.get("gX", 22)
    dX = cfg.get("dX", 2200)

    def t_arr(k):
        if k < have:
            return 0
        tt = (k - have + 1) * dW
        if k >= gX:
            tt += dX
        return tt
    avail = {}
    for k, key in enumerate(seq):
        avail[key] = 0 if k < have else max(t_arr(k) + 120, tRB + 180 if k >= 21 else 0)
    prio = cfg.get("prio", [1, 2, 0, 5, 3, 4])
    todo = [(p, dj, s) for p in prio for (dj, s) in seq if (p, dj, s) not in done_groups]
    needM = {j: {(p, dj, s) for p in (j, j + 1, j + 2) for (dj, s) in seq} - done_groups for j in range(4)}
    tW2 = max(t_arr(26) + 120, t_arr(gX - NGS) + dX + 200, tRB + 180)
    events = []
    t = 0
    rb_done = bool(PK6)
    z2_ready = {}
    z2_started = set()
    zorder = []
    z2_last = -10**9
    z2_wait = {}
    NZ = 2 if cfg.get("joint", 1) else 4
    while todo or len(z2_started) < NZ:
        if not rb_done and t >= tRB:
            events.append(("rb", t))
            rb_done = True
        cand = None
        for j in range(NZ):
            if j in z2_ready and j not in z2_started and t >= z2_ready[j] and t >= tW2 and t >= z2_last + 320 + 128:
                cand = ("z2", j)
                break
        if cand is None:
            for key in todo:
                p, dj, s = key
                if avail[(dj, s)] <= t and (rb_done or p not in (0, 5)):
                    cand = ("g", key)
                    break
        if cand is None:
            t += 32
            if not todo and not rb_done:
                events.append(("rb", t)); rb_done = True
            continue
        events.append(cand + (t,))
        if cand[0] == "z2":
            z2_started.add(cand[1])
            z2_last = t
            t += 320
            for j in list(z2_wait):
                if z2_wait[j] and (j - 1) in z2_started:
                    z2_wait[j] = False
                    z2_ready[j] = t + cfg.get("z2lag", 192)
                    events.append(("z2pre", j, t))
        else:
            key = cand[1]
            todo.remove(key)
            p = key[0]
            t += 32 * len([di for di in range(3) if 0 <= p - di <= 3])
            for j in range(4):
                needM[j].discard(key)
                if not needM[j] and j not in z2_ready and j not in z2_wait and j < NZ:
                    z2_wait[j] = True
            for j in list(z2_wait):
                if z2_wait[j] and (NSLOT == 4 or j < 2 or (j - 1) in z2_started):
                    z2_wait[j] = False
                    z2_ready[j] = t + cfg.get("z2lag", 192)
                    events.append(("z2pre", j, t))
    sys.stderr.write(f"modelled main phase {t} cycles; z2 starts {[e[2] for e in events if e[0]=='z2']}\n")

    EARLYOUT = cfg.get("earlyout", 0)
    if EARLYOUT:
        zs = [e for e in events if e[0] == "z2"]
        for n_, e in enumerate(zs):
            t_o = e[2] + 320 + 64 + EARLYOUT
            nxt = zs[n_ + 1][2] if n_ + 1 < len(zs) else None
            if nxt is not None and nxt - t_o > 256 or (nxt is None and NZ == 2):
                pos = max(i for i, x in enumerate(events) if x[-1] <= t_o) + 1
                t_n = events[pos][-1] if pos < len(events) else t_o + 96
                events.insert(pos, ("osync", e[1], t_n))
    outdone = set()
    items = []
    fillers = []
    epochs = {}
    if not PK6:
        fillers += [(f[0], f[1], 0) for f in norm_ops(accs[5], 5 & 1, *hws[5])]
    pump_timed = w_issue_ops(NGS - (wp["iss"] - wp["tr"]), tmin=0)
    for k in range(have, NG):
        tm_ = t_arr(k) - 60
        if k >= 21:
            tm_ = max(tm_, tRB)
        pump_timed += pump_ops(1, tmin=tm_)
    xf_timed = []
    timed = []
    for f in pump_timed + xf_timed:
        timed.append(f)
    last_post = None
    for ev in events:
        if ev[0] == "g":
            p, dj, s = ev[1]
            ep = ep6 if (PK6 or p not in (0, 5)) else (lambda: epochs.get("rb"))
            items.append(conv_item(p, dj, s, ep))
        elif ev[0] == "rb":
            def f_rb():
                sync()
                epochs["rb"] = state["epoch"]
                stamp("step7")
            items.append(Item([], fn=f_rb))
            items[-1].kind = ("rb", ev[1])
        elif ev[0] == "osync":
            j = ev[1]
            oo = out_ops(j)
            it = Item([], fn=(lambda oo=oo: (sync(), oo[0][0]())))
            it.kind = ("osync", ev[2])
            items.append(it)
            timed += [(f[0], f[1], ev[2] + 64) for f in oo[2:]]
            outdone.add(j)
        elif ev[0] == "z2pre":
            j = ev[1]
            timed += [(f[0], f[1], ev[2]) for f in z2_pre_ops(j)]
        elif ev[0] == "z2":
            j = ev[1]

            def f_z(j=j):
                sync(*xftok[j])
                epochs[("z", j)] = state["epoch"]
                stamp(f"z2_{j}")
            it = Item([], fn=f_z)
            it.kind = ("z2sync", ev[2], j)
            items.append(it)
            items += z2_items(j, (lambda j=j: epochs.get(("z", j))))
            timed += [(f[0], f[1], ev[2] + 320 + 64) for f in z2_post_ops(j)]
            if j > 0 and zorder[-1] not in outdone:
                timed += [(f[0], f[1], ev[2] + 32) for f in out_ops(zorder[-1])]
            zorder.append(j)
    timed.sort(key=lambda f: f[2])
    allf = fillers + timed
    Q.extend(items)

    fi = 0
    tm = 0
    credit = 0
    per = cfg.get("per", 16)
    for it in items:
        assert Q[qpos["cur"]] is it
        if it.fn is not None:
            tl = it.kind[1]
            while fi < len(allf) and allf[fi][2] <= tl:
                allf[fi][0]()
                fi += 1
            it.fn()
            it.emitted = True
            qpos["cur"] += 1
            continue
        prefetch()
        if it.btok is None:
            raise RuntimeError("B read not issued (epoch?)")
        pre = it.pre() if it.pre else []
        while any(x is None for x in pre):
            allf[fi][0]()
            fi += 1
            pre = it.pre()
        g.need(*btoks(it), *pre)
        for k, (D, Aop, C) in enumerate(it.mf):
            g.mfma(D, Aop, it.buf, C)
            tm += 32
            c0 = g.cost
            if k == len(it.mf) - 1:
                it.emitted = True
                prefetch()
            credit = min(credit, 0) + cfg.get("gap", 20) - (g.cost - c0)
            while fi < len(allf) and credit > 0 and allf[fi][2] <= tm:
                allf[fi][0]()
                credit -= allf[fi][1]
                fi += 1
        qpos["cur"] += 1
    while fi < len(allf):
        allf[fi][0]()
        fi += 1
    if NZ == 2:
        vS3 = [V(224 + i) for i in range(10)]
        p2 = z2_pre_ops(2, vPK)
        for f in p2:
            f[0]()
        for i in range(8):
            g.valu("v_add_u32", vS3[i], WB, vCs[i])
        for h in range(2):
            g.valu("v_add_u32", vS3[8 + h], WB, vXa[h])
            for i in range(4):
                g.valu("v_cvt_pk_bf16_f32", vOS[4 * h + i], vAcc[3][8 * h + 2 * i], vAcc[3][8 * h + 2 * i + 1])
            pending.append(g.ds_write(vS3[8 + h], vOS[4 * h:4 * h + 4], 0))
        sync(*xftok[2], *xftok[3])
        stamp("z2_2")
        e_ = state["epoch"]
        za, zb = z2_items(2, e_, vAcc2), z2_items(3, e_, vAcc3)
        for i in range(8):
            zb[i].bsrc = (vS3[i], 0)
        zz = za[:5] + [x for pr in zip(za[5:], zb[:5]) for x in pr] + zb[5:]
        Q.extend(zz)
        run(zz, ([] if 1 in outdone else out_ops(1, vPK)) + [(f[0], f[1], 32 * 17) for f in z2_post_ops(2, vAcc2, vPO)], min_budget=24, spread=False)
        for f in z2_post_ops(3, vAcc3, vOS):
            f[0]()
        sync()
        stamp("z2_3")
        o2, o3 = out_ops(2, vAcc2[0:8]), out_ops(3, vAcc2[8:16])
        o2[0][0](); o3[0][0]()
        for f in o2[2:] + o3[2:]:
            f[0]()
    else:
        sync()
        for f in out_ops(zorder[-1]):
            f[0]()
    stamp("end")
    if STAMPS:
        g.raw("  s_waitcnt vmcnt(0)")
        g.raw("  s_memtime s[74:75]")
        g.raw("  s_memrealtime s[98:99]")
        g.raw("  s_waitcnt lgkmcnt(0)")
        n = len(stamps)
        g.raw(f"  s_mov_b32 s{76 + n}, s74")
        n += 1
        stamps.append("drained")
        g.raw("  s_lshl_b32 s3, s2, 2")
        g.raw("  s_add_u32 s3, s3, s52")
        g.raw("  s_lshl_b32 s3, s3, 7")
        g.raw("  v_mov_b32 v0, 0")
        for i in range(n):
            g.raw(f"  v_mov_b32 v1, s{76 + i}")
            g.raw(f"  buffer_store_dword v1, v0, s[48:51], s3 offen offset:{4 * i}")
        g.raw("  v_mov_b32 v1, s96")
        g.raw(f"  buffer_store_dword v1, v0, s[48:51], s3 offen offset:{4 * 30}")
        g.raw("  v_mov_b32 v1, s98")
        g.raw(f"  buffer_store_dword v1, v0, s[48:51], s3 offen offset:{4 * 31}")
    g.raw("L_end:")
    g.raw("  s_endpgm")
    tail = """.section .rodata,"a"
.p2align 6
.amdhsa_kernel standalone__controlnet__diffusion_kernel
  .amdhsa_next_free_vgpr 512
  .amdhsa_next_free_sgpr 102
  .amdhsa_accum_offset 256
  .amdhsa_group_segment_fixed_size 0
  .amdhsa_kernarg_size 72
  .amdhsa_user_sgpr_count 2
  .amdhsa_user_sgpr_kernarg_segment_ptr 1
  .amdhsa_system_sgpr_workgroup_id_x 1
.end_amdhsa_kernel
"""
    sys.stderr.write(f"est issue cycles {g.cost}, nops {g.nops}, lines {len(g.lines)}, NS {NS}\n")
    if STAMPS:
        open(cfg.get("_out", "x") + ".names", "w").write(",".join(stamps))
    return "\n".join(hdr) + "\n" + g.text() + tail


if __name__ == "__main__":
    import json
    out = sys.argv[1]
    cfg = json.loads(sys.argv[2]) if len(sys.argv) > 2 else {}
    cfg["_out"] = out
    open(out, "w").write(build(cfg))
```
